```python
import torch

def _softmax(x, axis=-1):
    return torch.softmax(x, dim=axis)
def _gelu(x):
    return torch.nn.functional.gelu(x, approximate="tanh")
def _silu(x):
    return torch.nn.functional.silu(x)
def _sigmoid(x):
    return torch.sigmoid(x)
def _layernorm(x, axis=-1, eps=1e-5):
    m = x.mean(dim=axis, keepdim=True)
    v = x.var(dim=axis, keepdim=True, unbiased=False)
    return (x - m) / torch.sqrt(v + eps)
def _scatter_add(tgt, idx, src, axis=0):
    return tgt.clone().index_add_(axis, idx, src)
def _segment_sum(src, seg, n):
    out = torch.zeros((n,) + src.shape[1:], dtype=src.dtype)
    return out.index_add_(0, seg, src)
def _pad(x, pw):
    flat = tuple(v for pair in reversed(pw) for v in pair)
    return torch.nn.functional.pad(x, flat)

kernel_name = 'interleave_layers__linear_kernel_hedgehog__mha_block__prompt'

def setup_inputs():

    _w = (lambda a: (lambda t: t.to(torch.bfloat16) if t.is_floating_point() else t)(torch.as_tensor(a)))
    def _A_setup():
        B, S, D, H = 1, 2048, 448, 16
        Dh = D // H
        return {
            "x": _w((lambda *s: torch.randn(*s, dtype=torch.bfloat16) * 0.05)(B, S, D)),
            "wqkv": _w((lambda *s: torch.randn(*s, dtype=torch.bfloat16) * 0.4)(D, 3 * D)),
            "w_phi": _w((lambda *s: torch.randn(*s, dtype=torch.bfloat16) * 0.4)(H, Dh, Dh) * (Dh ** -0.5)),
            "wo": _w((lambda *s: torch.randn(*s, dtype=torch.bfloat16) * 0.05)(D, D)),
        }
    _A_in = _A_setup()

    def _B_setup():
        B, S, D, H = 1, 2048, 448, 16
        return {
            "x": _w((lambda *s: torch.randn(*s, dtype=torch.bfloat16) * 0.05)(B, S, D)),
            "wqkv": _w((lambda *s: torch.randn(*s, dtype=torch.bfloat16) * 0.1)(D, 3 * D)),
            "wo": _w((lambda *s: torch.randn(*s, dtype=torch.bfloat16) * 0.05)(D, D)),
        }
    _B_in = _B_setup()

    return {
        "A_x": _A_in["x"],
        "A_wqkv": _A_in["wqkv"],
        "A_w_phi": _A_in["w_phi"],
        "A_wo": _A_in["wo"],
        "B_x": _B_in["x"],
        "B_wqkv": _B_in["wqkv"],
        "B_wo": _B_in["wo"],
    }

def reference(A_x, A_wqkv, A_w_phi, A_wo, B_x, B_wqkv, B_wo):
    def _A_ref(x, wqkv, w_phi, wo):
        B, S, D = x.shape
        H = 16; Dh = D // H
        qkv = (lambda x, *d: x.permute(*d))((x @ wqkv).reshape(B, S, 3, H, Dh), 2, 0, 3, 1, 4)
        q, k, v = qkv[0], qkv[1], qkv[2]
        pq = torch.einsum("bhsd,hdf->bhsf", q, w_phi)
        pk = torch.einsum("bhsd,hdf->bhsf", k, w_phi)
        phi_q = torch.concatenate([_softmax(pq, axis=-1), _softmax(-pq, axis=-1)], axis=-1)
        phi_k = torch.concatenate([_softmax(pk, axis=-1), _softmax(-pk, axis=-1)], axis=-1)
        kv = torch.einsum("bhsf,bhsd->bhfd", phi_k, v)
        z  = torch.einsum("bhsf->bhf", phi_k)
        num = torch.einsum("bhqf,bhfd->bhqd", phi_q, kv)
        den = torch.einsum("bhqf,bhf->bhq", phi_q, z)[..., None] + 1e-6
        o = num / den
        return (lambda x, *d: x.permute(*d))(o, 0, 2, 1, 3).reshape(B, S, D) @ wo

    def _B_ref(x, wqkv, wo):
        B, S, D = x.shape
        H = 16
        Dh = D // H
        qkv = (lambda x, *d: x.permute(*d))((x @ wqkv).reshape(B, S, 3, H, Dh), 2, 0, 3, 1, 4)
        q, k, v = qkv[0], qkv[1], qkv[2]
        scores = torch.einsum("bhqd,bhkd->bhqk", q, k) * (Dh ** -0.5)
        p = _softmax(scores, axis=-1)
        o = torch.einsum("bhqk,bhkd->bhqd", p, v)
        return (lambda x, *d: x.permute(*d))(o, 0, 2, 1, 3).reshape(B, S, D) @ wo

    x = A_x
    x = x + _A_ref(_layernorm(x, axis=-1), A_wqkv, A_w_phi, A_wo)
    x = x + _B_ref(_layernorm(x, axis=-1), B_wqkv, B_wo)
    x = x + _A_ref(_layernorm(x, axis=-1), A_wqkv, A_w_phi, A_wo)
    x = x + _B_ref(_layernorm(x, axis=-1), B_wqkv, B_wo)
    return x
```

```python
import re

TRANS = ("v_exp_", "v_log_", "v_rcp_", "v_rsq_", "v_sqrt_", "v_sin_", "v_cos_")

def parse_regs(tok):
    tok = tok.strip()
    tok = tok.lstrip("-")
    m = re.fullmatch(r"abs\((.*)\)", tok)
    if m: tok = m.group(1)
    tok = tok.strip("|")
    m = re.fullmatch(r"([vas])(\d+)", tok)
    if m: return {(m.group(1), int(m.group(2)))}
    m = re.fullmatch(r"([vas])\[(\d+):(\d+)\]", tok)
    if m: return {(m.group(1), i) for i in range(int(m.group(2)), int(m.group(3)) + 1)}
    if tok == "vcc": return {("s", "vcc")}
    if tok == "exec": return {("s", "exec")}
    if tok == "m0": return {("s", "m0")}
    return set()

def split_ops(s):
    out, depth, cur = [], 0, ""
    for ch in s:
        if ch in "[(": depth += 1
        if ch in "])": depth -= 1
        if ch == "," and depth == 0:
            out.append(cur.strip()); cur = ""
        else: cur += ch
    if cur.strip(): out.append(cur.strip())
    return out

def mfma_passes(op):
    if "4x4x4" in op: return 2
    if "16x16x" in op: return 4
    return 8

class Ins:
    def __init__(self, text):
        self.text = text
        t = text.split(";")[0].strip()
        parts = t.split(None, 1)
        self.op = parts[0]
        rest = parts[1] if len(parts) > 1 else ""
        ops = split_ops(rest)
        self.mods = ""
        if ops:
            last = ops[-1].split()
            ops[-1] = last[0] if last else ""
            self.mods = " ".join(last[1:])
        self.ops = ops
        op = self.op
        R = [parse_regs(o) for o in ops]
        self.kind = "other"; self.w = set(); self.r = set()
        self.A = self.B = self.C = self.D = set()
        if op.startswith("v_mfma") or op.startswith("v_smfmac"):
            self.kind = "mfma"; self.passes = mfma_passes(op)
            self.D = R[0]; self.A = R[1]; self.B = R[2]
            if op.startswith("v_smfmac"):
                self.C = R[0]; self.B = self.B | R[3]
                self.cname = ops[0]
            else:
                self.C = R[3]; self.cname = ops[3]
            self.dname = ops[0]
            self.w = set(self.D); self.r = self.A | self.B | self.C
        elif op.startswith("v_"):
            self.kind = "trans" if op.startswith(TRANS) else "valu"
            if op.startswith("v_permlane") and "swap" in op:
                self.w = R[0] | R[1]; self.r = R[0] | R[1]
            elif op.startswith(("v_add_co", "v_sub_co", "v_addc_co", "v_subb_co")):
                self.w = R[0] | R[1]; self.r = set().union(*R[2:])
            elif op == "v_nop":
                pass
            else:
                self.w = set(R[0]); self.r = set().union(*R[1:]) if len(R) > 1 else set()
                if op.startswith(("v_fmac", "v_dot2c", "v_writelane")) or "dpp" in op or "row_" in self.mods or "quad_perm" in self.mods:
                    self.r |= R[0]
                if op.startswith("v_cndmask") and len(ops) == 3: self.r |= {("s", "vcc")}
        elif op.startswith("ds_"):
            self.kind = "ds"
            if op.startswith(("ds_read", "ds_bpermute", "ds_permute", "ds_swizzle")):
                self.w = R[0]; self.r = set().union(*R[1:])
            else:
                self.r = set().union(*R)
        elif op.startswith(("buffer_", "global_")):
            self.kind = "vmem"
            self.lds = "lds" in self.mods.split() or "load_lds" in op
            if op in ("buffer_inv", "buffer_wbl2"):
                pass
            elif "load" in op and not self.lds:
                self.w = R[0]; self.r = set().union(*R[1:])
            else:
                self.r = set().union(*R)
                if self.lds: self.r |= {("s", "m0")}
            self.wide_store = ("store" in op) and ("x4" in op or "x3" in op)
            if self.wide_store:
                self.data = R[0] if op.startswith("buffer_") else R[1]
        elif op.startswith("s_"):
            self.kind = "salu"
            if op.startswith(("s_cmp", "s_cbranch", "s_branch", "s_waitcnt", "s_barrier", "s_nop", "s_sleep", "s_endpgm", "s_setprio", "s_setpc")):
                self.r = set().union(*R) if R else set()
            else:
                self.w = set(R[0]) if R else set(); self.r = set().union(*R[1:]) if len(R) > 1 else set()
        self.states = 1
        if op == "s_nop": self.states = int(ops[0], 0) + 1

def need_states(p, c):
    n = 0
    vg = lambda s: {x for x in s if x[0] in "va"}
    sg = lambda s: {x for x in s if x[0] == "s"}
    pv = p.kind in ("valu", "trans")
    cv = c.kind in ("valu", "trans")
    if pv:
        pw = vg(p.w)
        if c.kind == "mfma" and pw & c.r: n = max(n, 2)
        if cv:
            if p.kind == "trans" and c.kind == "valu" and pw & c.r: n = max(n, 1)
            if c.op.startswith("v_permlane") and pw & c.r: n = max(n, 2)
            if ("dpp" in c.op or "row_" in c.mods or "quad_perm" in c.mods) and pw & c.r: n = max(n, 2)
            if c.op.startswith(("v_readlane", "v_readfirstlane")) and pw & c.r: n = max(n, 1)
            if ("op_sel" in p.mods and not p.op.startswith("v_pk")) or "sdwa" in p.op:
                if pw & (c.r | c.w): n = max(n, 1)
        sw = sg(p.w)
        if sw:
            if cv and sw & c.r:
                n = max(n, 4 if c.op.startswith(("v_readlane", "v_writelane")) else 2)
            if c.kind == "vmem" and sw & c.r: n = max(n, 5)
            if c.kind == "salu" and sw & c.r: n = max(n, 1)
    if p.kind == "mfma":
        P = p.passes
        t_ab = {2: 5, 4: 8, 8: 12, 16: 20}[P]
        if c.kind == "mfma":
            if p.D & (c.A | c.B): n = max(n, t_ab)
            if p.D & c.C:
                if c.cname == p.dname and c.passes == P: n = max(n, 2 if P == 2 else 0)
                else: n = max(n, {2: 4, 4: 6, 8: 10, 16: 18}[P])
            elif p.D & c.D: n = max(n, {2: 4, 4: 6, 8: 10, 16: 18}[P])
        elif c.kind in ("valu", "trans", "ds", "vmem"):
            if p.D & (c.r | c.w): n = max(n, t_ab)
            if cv and p.C & c.w: n = max(n, {2: 1, 4: 3, 8: 7, 16: 15}[P])
    if p.kind == "vmem" and getattr(p, "wide_store", False):
        if p.data & c.w: n = max(n, 2 if cv else 1)
    if p.kind == "salu" and ("s", "m0") in p.w and c.kind == "vmem" and c.lds: n = max(n, 1)
    return n

class Asm:
    def __init__(self):
        self.lines = []
        self.hist = []
        self.vm = []
        self.lg = []
        self.nops = 0
        self.uid = 0
        self.log_nops = False
    def raw(self, s): self.lines.append(s)
    def comment(self, s): self.lines.append("    ; " + s)
    def label(self, name): self.lines.append(name + ":")
    def newlabel(self, base):
        self.uid += 1
        return f"L_{base}_{self.uid}"
    def flush_hist(self, states=0):
        self.hist = []
    def __call__(self, text, tag=None):
        for line in text.strip().split("\n"):
            line = line.strip()
            if not line or line.startswith(";"): continue
            self.one(line, tag)
    def one(self, line, tag=None):
        c = Ins(line)
        dist = 0; need = 0
        for p in reversed(self.hist):
            k = need_states(p, c) - dist
            if k > need: need = k; why = p
            dist += p.states
            if dist > 24: break
        if need > 0:
            if self.log_nops: print("nop", need, "between", why.text, "->", line)
            rem = need
            while rem > 0:
                k = min(rem, 16)
                nop = Ins(f"s_nop {k-1}")
                self.lines.append("    " + nop.text); self.hist.append(nop); rem -= k
            self.nops += need
        self.lines.append("    " + line)
        self.hist.append(c)
        if len(self.hist) > 40: self.hist = self.hist[-40:]
        if c.kind == "vmem": self.vm.append(tag)
        elif c.kind == "ds": self.lg.append(tag)
        elif c.op == "s_waitcnt":
            m = re.search(r"vmcnt\((\d+)\)", line)
            if m:
                n = int(m.group(1)); self.vm = self.vm[len(self.vm) - n:] if n else []
            m = re.search(r"lgkmcnt\((\d+)\)", line)
            if m:
                n = int(m.group(1)); self.lg = self.lg[len(self.lg) - n:] if n else []
        assert len(self.vm) <= 63, "too many outstanding vmem ops"
    def _count_after(self, q, tag):
        idx = [i for i, t in enumerate(q) if t == tag]
        if not idx: return None
        return len(q) - 1 - idx[-1]
    def wait(self, vm=None, lg=None):
        parts = []
        if vm is not None:
            tags = vm if isinstance(vm, list) else [vm]
            ns = [self._count_after(self.vm, t) for t in tags]; ns = [n for n in ns if n is not None]
            if ns: parts.append(f"vmcnt({min(ns)})")
        if lg is not None:
            tags = lg if isinstance(lg, list) else [lg]
            ns = [self._count_after(self.lg, t) for t in tags]; ns = [n for n in ns if n is not None]
            if ns: parts.append(f"lgkmcnt({min(min(ns), 15)})")
        if parts: self.one("s_waitcnt " + " ".join(parts))
    def align(self, p2): self.lines.append(f"    .p2align {p2}")
    def text(self): return "\n".join(self.lines) + "\n"

def vr(a, n=1, k="v"):
    return f"{k}{a}" if n == 1 else f"{k}[{a}:{a+n-1}]"
def ar(a, n=1): return vr(a, n, "a")
def sr(a, n=1): return vr(a, n, "s")
```

```python
S, D, H, DH = 2048, 448, 16, 28
WF_A = 0x000000
WF_B = 0x160000
WF_HEAD = 3 * 28 * 1024
WO_A = 0x2C0000
WO_B = 0x330000
XF   = 0x400000
OF   = 0x600000
KVP  = 0x800000
KV   = 0xA00000
FLAGS = 0x1200000
F_KVP = FLAGS
F_KV  = FLAGS + 0x2000
F_O   = FLAGS + 0x6000
F_X   = FLAGS + 0x8000
F_XCC = FLAGS + 0xA000
FLAGS_BYTES = 0x10000
DBG  = 0x1300000
WS_BYTES = 0x2000000
LOG2E = 1.4426950408889634
L_W = 0
L_S = 86016
L_PHI = L_S
L_VV = L_S + 16384
L_KVS = L_S + 24576
L_OST = L_S + 28672
L_VT = L_S + 61440
L_QS = L_S + 69632
L_ORED = L_S
LDS_BYTES = 163840
```

```python
from asmlib import *
from layout import *
from pre import srd, f2u

sRB, sH, sW, sFAST = 12, 13, 14, 16
sT0, sT1, sT2, sT3 = 17, 18, 19, 20
sXRD, sWA, sWB, sOWR, sORD, sXWR, sACT = 30, 31, 32, 33, 34, 35, 36
sKVPW, sKVPR, sKVO = 37, 38, 39
sFKVPW, sFKVPR, sFKVW, sFKVR, sFOW, sFOR, sFXW, sFXR = 40, 41, 42, 43, 44, 45, 46, 47
sWOA, sWOB, sM0W, sTO, sXCC = 48, 49, 50, 51, 52
sUP = 54
sM1, sM2, sM3 = 56, 58, 60
sST = 62
sSTB = 64
sOUT = 65
vL16, vT0, vT1, vT2, vT3, vIDX = 1, 2, 3, 4, 5, 6
vRS = 8
vC = 10
vA0 = 12
XRES = 16
X = 32
ACCK, ACCV = 144, 160
RING = 176
ACCS = 200
EP, EM = 208, 224
PHQ = 240
ADR = 248
QF, OA = 32, 64
SB = [128, 144, 160]
KVB = [224, 176, 192, 208]

class Gen:
    def __init__(self, name, stamps=False, stop_after=None):
        self.a = Asm(); self.name = name; self.stamps = stamps; self.nst = 0
        self.stop_after = stop_after
    def stamp(self, label):
        if not self.stamps: return
        a = self.a
        a(f"s_memtime s[{sST}:{sST+1}]\ns_waitcnt lgkmcnt(0)")
        a(f"v_writelane_b32 v7, s{sST}, {self.nst}")
        self.names = getattr(self, "names", []) + [label]
        self.nst += 1
    def upper(self): self.a(f"s_mov_b64 exec, s[{sUP}:{sUP+1}]")
    def full(self): self.a("s_mov_b64 exec, -1")
    def poll(self, voff, soff, expect):
        a = self.a
        L = a.newlabel("poll"); Ld = a.newlabel("pdone")
        a.label(L)
        a(f"""buffer_load_dword v{vT3}, v{voff}, s[4:7], s{soff} offen sc1
        s_waitcnt vmcnt(0)
        v_cmp_gt_u32 vcc, {expect}, v{vT3}
        s_cbranch_vccz {Ld}
        s_sub_u32 s{sTO}, s{sTO}, 1
        s_cmp_lg_u32 s{sTO}, 0
        s_cbranch_scc1 {L}
        s_endpgm""")
        a.label(Ld)
    def dual(self, lines, tag=None):
        a = self.a
        Ls = a.newlabel("slow"); Lj = a.newlabel("join")
        a(f"s_cmp_eq_u32 s{sFAST}, 1\ns_cbranch_scc0 {Ls}")
        vm0 = list(a.vm); h0 = list(a.hist)
        for l in lines: a(l, tag=tag)
        a(f"s_branch {Lj}")
        a.label(Ls)
        a.vm = vm0; a.hist = h0
        for l in lines: a(l + " sc1", tag=tag)
        a.label(Lj)
    def flag(self, soff, val, intra):
        a = self.a
        a(f"s_mov_b64 exec, 1\nv_mov_b32 v{vT3}, {val}")
        l = f"buffer_store_dword v{vT3}, off, s[4:7], s{soff}"
        if intra: self.dual([l], tag="flag")
        else: a(l + " sc1", tag="flag")
        self.full()
    def wdma(self, src, i0, i1, tag="wdma"):
        a = self.a
        for i in range(i0, i1):
            a(f"s_add_u32 m0, s{sM0W}, {4096*i}")
            a(f"s_add_u32 s{sT0}, s{src}, {4096*i}")
            a(f"buffer_load_dwordx4 v{vL16}, s[4:7], s{sT0} offen lds", tag=tag)
    def wo_load(self, src, abase, k0, k1, tag="wo"):
        a = self.a
        for k in range(k0, k1):
            if k == k0 or k % 4 == 0: a(f"s_add_u32 s{sT1}, s{src}, {4096*(k//4)}")
            a(f"buffer_load_dwordx4 {ar(abase+4*k,4)}, v{vL16}, s[4:7], s{sT1} offen offset:{1024*(k%4)}", tag=tag)
    def x_loads(self, sc):
        a = self.a
        for ks in range(28):
            if ks % 4 == 0: a(f"s_add_u32 s{sT1}, s{sXRD}, {4096*(ks//4)}")
            a(f"buffer_load_dwordx4 {vr(X+4*ks,4)}, v{vL16}, s[4:7], s{sT1} offen offset:{1024*(ks%4)}{sc}", tag=("x", ks))

    def startup(self):
        a = self.a; n = self.name
        a.label(n)
        a(f"""s_cmp_ge_u32 s2, 256
        s_cbranch_scc1 {n}_end
        s_load_dwordx2 s[20:21], s[0:1], 72
        s_load_dwordx2 s[22:23], s[0:1], 56
        v_lshrrev_b32 v2, 6, v0
        v_and_b32 v0, 63, v0
        v_readfirstlane_b32 s{sW}, v2
        v_lshlrev_b32 v{vL16}, 4, v0
        s_and_b32 s{sRB}, s2, 7
        s_lshl_b32 s{sRB}, s{sRB}, 1
        s_bfe_u32 s{sT0}, s2, 0x10003
        s_or_b32 s{sRB}, s{sRB}, s{sT0}
        s_lshr_b32 s{sH}, s2, 4
        s_mul_i32 s{sT0}, s{sH}, {WF_HEAD}
        s_lshl_b32 s{sM0W}, s{sW}, 10
        s_add_u32 s{sT0}, s{sT0}, s{sM0W}
        s_add_u32 s{sWA}, s{sT0}, {WF_A}
        s_add_u32 s{sWB}, s{sT0}, {WF_B}
        s_lshl_b32 s{sT0}, s{sRB}, 2
        s_add_u32 s{sT1}, s{sT0}, s{sW}
        s_mul_i32 s{sXRD}, s{sT1}, 28672
        s_add_u32 s{sXRD}, s{sXRD}, {XF}
        s_waitcnt lgkmcnt(0)""")
        srd(a, 4, 20, WS_BYTES)
        srd(a, 8, 22, S * D * 2)
        if self.stamps: a("v_mov_b32 v7, 0")
        self.stamp("start")
        self.wdma(sWA, 0, 14, tag="wkv")
        self.x_loads("")
        self.wdma(sWA, 14, 21, tag="wq")
        a(f"""s_lshl_b32 s{sT0}, s{sRB}, 2
        s_add_u32 s{sT1}, s{sT0}, s{sW}
        s_lshr_b32 s{sT2}, s{sH}, 2
        s_add_u32 s{sT2}, s{sT2}, s{sT0}
        s_lshl_b32 s{sOWR}, s{sT1}, 4
        s_add_u32 s{sOWR}, s{sOWR}, s{sH}
        s_lshl_b32 s{sOWR}, s{sOWR}, 11
        s_add_u32 s{sOWR}, s{sOWR}, {OF}
        s_lshl_b32 s{sORD}, s{sT2}, 15
        s_lshl_b32 s{sT3}, s{sW}, 13
        s_add_u32 s{sORD}, s{sORD}, s{sT3}
        s_add_u32 s{sORD}, s{sORD}, {OF}
        s_lshl_b32 s{sFOW}, s{sT1}, 7
        s_add_u32 s{sFXR}, s{sFOW}, {F_X}
        s_lshl_b32 s{sT3}, s{sH}, 2
        s_add_u32 s{sFOW}, s{sFOW}, s{sT3}
        s_add_u32 s{sFOW}, s{sFOW}, {F_O}
        s_lshl_b32 s{sFOR}, s{sT2}, 7
        s_add_u32 s{sFXW}, s{sFOR}, {F_X}
        s_lshl_b32 s{sT3}, s{sW}, 4
        s_add_u32 s{sFOR}, s{sFOR}, s{sT3}
        s_add_u32 s{sFOR}, s{sFOR}, {F_O}
        s_and_b32 s{sT3}, s{sH}, 3
        s_lshl_b32 s{sT3}, s{sT3}, 2
        s_add_u32 s{sT3}, s{sT3}, s{sW}
        s_cmp_lt_u32 s{sT3}, 14
        s_cselect_b32 s{sACT}, 1, 0
        s_min_u32 s{sT3}, s{sT3}, 13
        s_mul_i32 s{sXWR}, s{sT2}, 28672
        s_lshl_b32 s{sT1}, s{sT3}, 11
        s_add_u32 s{sXWR}, s{sXWR}, s{sT1}
        s_add_u32 s{sXWR}, s{sXWR}, {XF}
        s_lshl_b32 s{sT1}, s{sT3}, 2
        s_add_u32 s{sFXW}, s{sFXW}, s{sT1}
        s_lshl_b32 s{sT1}, s{sT3}, 15
        s_add_u32 s{sWOA}, s{sT1}, {WO_A}
        s_add_u32 s{sWOB}, s{sT1}, {WO_B}
        s_mul_i32 s{sOUT}, s{sT2}, {32*896}
        s_lshl_b32 s{sT1}, s{sT3}, 6
        s_add_u32 s{sOUT}, s{sOUT}, s{sT1}""")
        a(f"buffer_load_dwordx4 {vr(EP,4)}, v{vL16}, s[4:7], s{sXWR} offen", tag="xres")
        a(f"buffer_load_dwordx4 {vr(EP+4,4)}, v{vL16}, s[4:7], s{sXWR} offen offset:1024", tag="xres")
        a(f"""s_lshl_b32 s{sT0}, s{sH}, 16
        s_lshl_b32 s{sT1}, s{sRB}, 12
        s_add_u32 s{sKVPW}, s{sT0}, s{sT1}
        s_add_u32 s{sKVPW}, s{sKVPW}, {KVP}
        s_add_u32 s{sKVPR}, s{sT0}, s{sM0W}
        s_add_u32 s{sKVPR}, s{sKVPR}, {KVP}
        s_lshl_b32 s{sT0}, s{sH}, 18
        s_lshl_b32 s{sT1}, s{sRB}, 14
        s_add_u32 s{sKVO}, s{sT0}, s{sT1}
        s_lshl_b32 s{sT1}, s{sW}, 12
        s_add_u32 s{sKVO}, s{sKVO}, s{sT1}
        s_add_u32 s{sKVO}, s{sKVO}, {KV}
        s_lshl_b32 s{sT0}, s{sH}, 1
        s_lshr_b32 s{sT1}, s{sW}, 1
        s_add_u32 s{sT0}, s{sT0}, s{sT1}
        s_lshl_b32 s{sT0}, s{sT0}, 7
        s_add_u32 s{sFKVPR}, s{sT0}, {F_KVP}
        s_lshl_b32 s{sT0}, s{sRB}, 1
        s_and_b32 s{sT1}, s{sW}, 1
        s_add_u32 s{sT0}, s{sT0}, s{sT1}
        s_lshl_b32 s{sT0}, s{sT0}, 2
        s_add_u32 s{sFKVPW}, s{sFKVPR}, s{sT0}
        s_lshl_b32 s{sT0}, s{sH}, 2
        s_add_u32 s{sT0}, s{sT0}, s{sW}
        s_lshl_b32 s{sT0}, s{sT0}, 7
        s_add_u32 s{sFKVR}, s{sT0}, {F_KV}
        s_lshl_b32 s{sT0}, s{sRB}, 2
        s_add_u32 s{sFKVW}, s{sFKVR}, s{sT0}
        s_mov_b32 s{sUP}, 0
        s_mov_b32 s{sUP+1}, -1
        s_mov_b32 s{sM1}, 0x22222222
        s_mov_b32 s{sM1+1}, 0x22222222
        s_mov_b32 s{sM2}, 0x44444444
        s_mov_b32 s{sM2+1}, 0x44444444
        s_mov_b32 s{sM3}, 0x88888888
        s_mov_b32 s{sM3+1}, 0x88888888
        s_mov_b32 s{sTO}, 0x400000
        s_mov_b32 s{sFAST}, 0
        v_mov_b32 v{vIDX}, 0xdddddddd
        s_getreg_b32 s{sXCC}, hwreg(HW_REG_XCC_ID, 0, 4)
        s_add_u32 s{sXCC}, s{sXCC}, 1
        s_lshl_b32 s{sT0}, s{sRB}, 7
        s_lshl_b32 s{sT1}, s{sH}, 2
        s_add_u32 s{sT0}, s{sT0}, s{sT1}
        s_add_u32 s{sT0}, s{sT0}, {F_XCC}
        s_mov_b64 exec, 1
        v_mov_b32 v{vT3}, s{sXCC}
        buffer_store_dword v{vT3}, off, s[4:7], s{sT0} sc1""", tag="xcc")
        self.full()
        self.wo_load(sWOA, 0, 0, 10)
        self.addr_A()
        a.wait(vm="wkv")
        a("s_barrier")

    def addr_A(self):
        a = self.a
        a(f"""v_and_b32 v{vT0}, 31, v0
        v_lshrrev_b32 v{vT1}, 5, v0
        s_lshl_b32 s{sT0}, s{sW}, 5
        v_add_u32 v{vT2}, s{sT0}, v{vT0}
        v_and_b32 v{vT3}, 9, v0
        v_bfe_u32 v{vA0}, v0, 1, 1
        v_lshl_or_b32 v{vT3}, v{vA0}, 2, v{vT3}
        v_bfe_u32 v{vA0}, v0, 2, 1
        v_lshl_or_b32 v{vT3}, v{vA0}, 1, v{vT3}
        v_xor_b32 v{vT3}, v{vT3}, v{vT1}
        v_lshlrev_b32 v{vT3}, 3, v{vT3}
        v_lshl_add_u32 v{vT3}, v{vT2}, 7, v{vT3}
        v_add_u32 v{ADR}, {L_PHI}, v{vT3}
        v_bfe_u32 v{vT3}, v0, 1, 3
        v_xor_b32 v{vT3}, v{vT3}, v{vT1}
        v_lshlrev_b32 v{vT3}, 3, v{vT3}
        v_lshl_add_u32 v{vT3}, v{vT2}, 6, v{vT3}
        v_add_u32 v{ADR+1}, {L_VV}, v{vT3}""")
        a(f"""v_bfe_u32 v{vT0}, v0, 2, 2
        v_lshrrev_b32 v{vT1}, 4, v0
        v_lshl_add_u32 v{vT2}, v{vT1}, 3, v{vT0}
        v_bfe_u32 v{vT3}, v0, 4, 1
        v_lshlrev_b32 v{vT3}, 3, v{vT3}
        v_bfe_u32 v{vA0}, v0, 3, 1
        v_lshl_or_b32 v{vT3}, v{vA0}, 2, v{vT3}
        v_bfe_u32 v{vA0}, v0, 2, 1
        v_or_b32 v{vT3}, v{vT3}, v{vA0}
        v_and_b32 v{vA0}, 3, v0
        s_lshr_b32 s{sT0}, s{sW}, 1
        s_lshl_b32 s{sT0}, s{sT0}, 3
        v_or_b32 v{vA0}, s{sT0}, v{vA0}
        v_xor_b32 v{vT3}, v{vT3}, v{vA0}
        v_lshlrev_b32 v{vT3}, 3, v{vT3}
        v_lshl_add_u32 v{vT3}, v{vT2}, 7, v{vT3}
        v_add_u32 v{ADR+2}, {L_PHI}, v{vT3}
        v_xor_b32 v{ADR+3}, 16, v{ADR+2}
        v_add_u32 v{ADR+3}, 512, v{ADR+3}
        v_xor_b32 v{ADR+4}, 32, v{ADR+2}
        v_xor_b32 v{ADR+5}, 32, v{ADR+3}
        v_bfe_u32 v{vT3}, v0, 4, 1
        v_lshlrev_b32 v{vT3}, 2, v{vT3}
        v_bfe_u32 v{vA0}, v0, 3, 1
        v_or_b32 v{vT3}, v{vT3}, v{vA0}
        v_and_b32 v{vA0}, 3, v0
        s_and_b32 s{sT0}, s{sW}, 1
        s_lshl_b32 s{sT0}, s{sT0}, 2
        v_or_b32 v{vA0}, s{sT0}, v{vA0}
        v_xor_b32 v{vT3}, v{vT3}, v{vA0}
        v_lshlrev_b32 v{vT3}, 3, v{vT3}
        v_lshl_add_u32 v{vT3}, v{vT2}, 6, v{vT3}
        v_add_u32 v{ADR+6}, {L_VV}, v{vT3}
        v_xor_b32 v{ADR+7}, 16, v{ADR+6}
        v_add_u32 v{ADR+7}, 256, v{ADR+7}""")

    def addr_B(self):
        a = self.a
        a(f"""v_and_b32 v{vT0}, 31, v0
        v_lshrrev_b32 v{vT1}, 5, v0
        s_lshl_b32 s{sT0}, s{sW}, 11
        s_add_u32 s{sT0}, s{sT0}, {L_VT}
        v_bfe_u32 v{vT3}, v0, 1, 3
        v_xor_b32 v{vT3}, v{vT3}, v{vT1}
        v_lshlrev_b32 v{vT3}, 3, v{vT3}
        v_lshl_add_u32 v{vT3}, v{vT0}, 6, v{vT3}
        v_add_u32 v{ADR}, s{sT0}, v{vT3}
        v_bfe_u32 v{vT0}, v0, 2, 2
        v_lshl_add_u32 v{vT2}, v{vT1}, 3, v{vT0}
        v_bfe_u32 v{vT3}, v0, 3, 1
        v_lshl_or_b32 v{vT3}, v{vT1}, 2, v{vT3}
        v_and_b32 v{vA0}, 3, v0
        v_bfe_u32 v{vT0}, v0, 4, 1
        v_lshl_or_b32 v{vA0}, v{vT0}, 2, v{vA0}
        v_xor_b32 v{vT3}, v{vT3}, v{vA0}
        v_lshlrev_b32 v{vT3}, 3, v{vT3}
        v_lshl_add_u32 v{vT3}, v{vT2}, 6, v{vT3}
        v_add_u32 v{ADR+1}, s{sT0}, v{vT3}
        v_xor_b32 v{ADR+2}, 16, v{ADR+1}
        v_add_u32 v{ADR+2}, 256, v{ADR+2}""")

    def gemm_kv(self):
        a = self.a
        def rd(ks):
            s = RING + 8 * (ks % 3)
            return (f"ds_read_b128 {vr(s,4)}, v{vL16} offset:{L_W+1024*ks}", f"ds_read_b128 {vr(s+4,4)}, v{vL16} offset:{L_W+28672+1024*ks}")
        for ks in range(2):
            for l in rd(ks): a(l, tag=("w", ks))
        for ks in range(28):
            s = RING + 8 * (ks % 3); x = X + 4 * ks
            a.wait(vm=("x", ks), lg=("w", ks))
            ck = vr(ACCK, 16) if ks else "0"; cv = vr(ACCV, 16) if ks else "0"
            c0 = vr(ACCS, 4) if ks else "0"; c1 = vr(ACCS + 4, 4) if ks else "0"
            a(f"v_mfma_f32_32x32x16_bf16 {vr(ACCK,16)}, {vr(s,4)}, {vr(x,4)}, {ck}")
            if ks + 2 < 28: a(rd(ks + 2)[0], tag=("w", ks + 2))
            a(f"v_mfma_f32_4x4x4_16b_bf16 {vr(ACCS,4)}, {vr(x,2)}, {vr(x,2)}, {c0}")
            a(f"v_mfma_f32_32x32x16_bf16 {vr(ACCV,16)}, {vr(s+4,4)}, {vr(x,4)}, {cv}")
            if ks + 2 < 28: a(rd(ks + 2)[1], tag=("w", ks + 2))
            a(f"v_mfma_f32_4x4x4_16b_bf16 {vr(ACCS+4,4)}, {vr(x+2,2)}, {vr(x+2,2)}, {c1}")
    def gemm_q(self, acc):
        a = self.a
        base = L_W + 57344 - 32768
        a(f"v_add_u32 v{vA0}, 32768, v{vL16}")
        def rd(ks): return f"ds_read_b128 {vr(RING+4*(ks%4),4)}, v{vA0} offset:{base+1024*ks}"
        for ks in range(3): a(rd(ks), tag=("wq", ks))
        for ks in range(28):
            a.wait(lg=("wq", ks))
            c = vr(acc, 16) if ks else "0"
            a(f"v_mfma_f32_32x32x16_bf16 {vr(acc,16)}, {vr(RING+4*(ks%4),4)}, {vr(X+4*ks,4)}, {c}")
            if ks + 3 < 28: a(rd(ks + 3), tag=("wq", ks + 3))
    def stats(self):
        a = self.a
        a(f"""v_pk_add_f32 {vr(ACCS,2)}, {vr(ACCS,2)}, {vr(ACCS+4,2)}
        v_pk_add_f32 {vr(ACCS+2,2)}, {vr(ACCS+2,2)}, {vr(ACCS+6,2)}
        v_cndmask_b32 v{vT0}, v{ACCS}, v{ACCS+1}, s[{sM1}:{sM1+1}]
        v_cndmask_b32 v{vT0}, v{vT0}, v{ACCS+2}, s[{sM2}:{sM2+1}]
        v_cndmask_b32 v{vT0}, v{vT0}, v{ACCS+3}, s[{sM3}:{sM3+1}]
        v_mov_b32 v{vT1}, v{vT0}
        v_mov_b32 v{vT2}, v{ACCK+12}
        v_mov_b32 v{vT3}, v{ACCK+12}
        v_permlane32_swap_b32 v{vT0}, v{vT1}
        v_permlane32_swap_b32 v{vT2}, v{vT3}
        v_add_f32 v{vT0}, v{vT0}, v{vT1}
        v_mul_f32 v{vT3}, {f2u(1.0/D)}, v{vT3}
        v_mul_f32 v{vT0}, {f2u(1.0/D)}, v{vT0}
        v_fma_f32 v{vT0}, -v{vT3}, v{vT3}, v{vT0}
        v_max_f32 v{vT0}, 0, v{vT0}
        v_add_f32 v{vT0}, {f2u(1e-5)}, v{vT0}
        v_rsq_f32 v{vRS}, v{vT0}""")
    def scale16(self, acc, sreg):
        for p in range(8):
            self.a(f"v_pk_mul_f32 {vr(acc+2*p,2)}, {vr(acc+2*p,2)}, {vr(sreg,2)} op_sel_hi:[1,0]")
    def pack16(self, dst, src):
        for p in range(8): self.a(f"v_cvt_pk_bf16_f32 v{dst+p}, v{src+2*p}, v{src+2*p+1}")
    def tree3(self, op, dst, regs):
        a = self.a
        a(f"{op} v{dst}, v{regs[0]}, v{regs[1]}, v{regs[2]}")
        i = 3
        while i + 1 < len(regs):
            a(f"{op} v{dst}, v{dst}, v{regs[i]}, v{regs[i+1]}"); i += 2
        if i < len(regs): a(f"{op} v{dst}, v{dst}, v{regs[i]}, v{regs[i]}")
    def feature_map(self, acc, outp, outm):
        a = self.a
        self.upper()
        for r in range(12, 16): a(f"v_mov_b32 v{acc+r}, v{acc}")
        self.full()
        regs = list(range(acc, acc + 16))
        self.tree3("v_max3_f32", vT0, regs)
        self.tree3("v_min3_f32", vT2, regs)
        a(f"""v_mov_b32 v{vT1}, v{vT0}
        v_mov_b32 v{vT3}, v{vT2}
        v_permlane32_swap_b32 v{vT0}, v{vT1}
        v_permlane32_swap_b32 v{vT2}, v{vT3}
        v_max_f32 v{vT0}, v{vT0}, v{vT1}
        v_min_f32 v{vT2}, v{vT2}, v{vT3}
        v_mul_f32 v{vC}, -v{vT0}, v{vRS}
        v_mul_f32 v{vC+1}, v{vT2}, v{vRS}""")
        for p in range(8):
            a(f"v_pk_fma_f32 {vr(EP+2*p,2)}, {vr(acc+2*p,2)}, {vr(vRS,2)}, {vr(vC,2)} op_sel_hi:[1,0,0]")
            a(f"v_pk_fma_f32 {vr(EM+2*p,2)}, {vr(acc+2*p,2)}, {vr(vRS,2)}, {vr(vC,2)} op_sel:[0,0,1] op_sel_hi:[1,0,1] neg_lo:[1,0,0] neg_hi:[1,0,0]")
        for r in range(16):
            a(f"v_exp_f32 v{EP+r}, v{EP+r}")
            a(f"v_exp_f32 v{EM+r}, v{EM+r}")
        self.upper()
        for r in range(12, 16): a(f"v_mov_b32 v{EP+r}, 0\nv_mov_b32 v{EM+r}, 0")
        self.full()
        a(f"v_pk_add_f32 {vr(vT0,2)}, {vr(EP,2)}, {vr(EP+2,2)}")
        a(f"v_pk_add_f32 {vr(vT2,2)}, {vr(EM,2)}, {vr(EM+2,2)}")
        for p in range(2, 8):
            a(f"v_pk_add_f32 {vr(vT0,2)}, {vr(vT0,2)}, {vr(EP+2*p,2)}")
            a(f"v_pk_add_f32 {vr(vT2,2)}, {vr(vT2,2)}, {vr(EM+2*p,2)}")
        a(f"""v_add_f32 v{vT0}, v{vT0}, v{vT1}
        v_add_f32 v{vT2}, v{vT2}, v{vT3}
        v_mov_b32 v{vT1}, v{vT0}
        v_mov_b32 v{vT3}, v{vT2}
        v_permlane32_swap_b32 v{vT0}, v{vT1}
        v_permlane32_swap_b32 v{vT2}, v{vT3}
        v_add_f32 v{vT0}, v{vT0}, v{vT1}
        v_add_f32 v{vT2}, v{vT2}, v{vT3}
        v_rcp_f32 v{vC}, v{vT0}
        v_rcp_f32 v{vC+1}, v{vT2}""")
        for p in range(8):
            a(f"v_pk_mul_f32 {vr(EP+2*p,2)}, {vr(EP+2*p,2)}, {vr(vC,2)} op_sel_hi:[1,0]")
            a(f"v_pk_mul_f32 {vr(EM+2*p,2)}, {vr(EM+2*p,2)}, {vr(vC,2)} op_sel:[0,1] op_sel_hi:[1,1]")
        self.pack16(outp, EP)
        self.pack16(outm, EM)
    def bcast_up_rcp(self, src, add=None):
        a = self.a
        a(f"""v_mov_b32 v{vT0}, v{src}
        v_mov_b32 v{vT1}, v{src}
        v_permlane32_swap_b32 v{vT0}, v{vT1}""")
        if add is not None: a(f"v_add_f32 v{vT1}, {f2u(add)}, v{vT1}")
        a(f"v_rcp_f32 v{vC}, v{vT1}")
    def publish_o(self, acc, layer):
        a = self.a
        self.scale16(acc, vC)
        self.pack16(EP, acc)
        self.dual([f"buffer_store_dwordx4 {vr(EP,4)}, v{vL16}, s[4:7], s{sOWR} offen",
                   f"buffer_store_dwordx4 {vr(EP+4,4)}, v{vL16}, s[4:7], s{sOWR} offen offset:1024"], tag="ost")

    def layer_A(self, it):
        a = self.a; layer = 2 * it + 1
        self.gemm_kv()
        self.stamp("A gemm kv")
        if it == 0: self.wo_load(sWOA, 0, 10, 32)
        if it == 0:
            a.wait(vm="xres")
            for p in range(8):
                a(f"v_lshlrev_b32 v{XRES+2*p}, 16, v{EP+p}\nv_and_b32 v{XRES+2*p+1}, 0xffff0000, v{EP+p}")
        self.stats()
        self.scale16(ACCV, vRS)
        self.upper(); a(f"v_mov_b32 v{ACCV+12}, 1.0"); self.full()
        self.pack16(RING, ACCV)
        for j in range(4):
            if j: a(f"v_xor_b32 v{vA0}, {16*j}, v{ADR+1}")
            a(f"ds_write_b64 v{vA0 if j else ADR+1}, {vr(RING+2*j,2)}", tag="stage")
        self.feature_map(ACCK, RING, RING + 8)
        for sgn in range(2):
            for j in range(4):
                c = 64 * sgn + 16 * j
                if c: a(f"v_xor_b32 v{vA0+(j&1)}, {c}, v{ADR}")
                a(f"ds_write_b64 v{vA0+(j&1) if c else ADR}, {vr(RING+8*sgn+2*j,2)}", tag="stage")
        a.wait(lg="stage")
        if it == 0: a.wait(vm="wq")
        a("s_barrier")
        self.stamp("A phi_k")
        def rds(k):
            b = EP + 12 * (k % 2)
            for t in range(2):
                for r in range(2):
                    a(f"ds_read_b64_tr_b16 {vr(b+4*t+2*r,2)}, v{ADR+2+2*t+r} offset:{4096*k}", tag=("kv", k))
            for r in range(2):
                a(f"ds_read_b64_tr_b16 {vr(b+8+2*r,2)}, v{ADR+6+r} offset:{2048*k}", tag=("kv", k))
        rds(0); rds(1)
        for k in range(4):
            b = EP + 12 * (k % 2)
            a.wait(lg=("kv", k))
            for t in range(2):
                c = vr(ACCS + 4 * t, 4) if k else "0"
                a(f"v_mfma_f32_16x16x32_bf16 {vr(ACCS+4*t,4)}, {vr(b+4*t,4)}, {vr(b+8,4)}, {c}")
            if k + 2 < 4: rds(k + 2)
        a(f"""v_lshrrev_b32 v{vT0}, 5, v0
        v_bfe_u32 v{vT1}, v0, 4, 1
        v_and_b32 v{vT2}, 15, v0
        v_lshl_or_b32 v{vT2}, v{vT1}, 5, v{vT2}
        v_lshlrev_b32 v{vT2}, 4, v{vT2}
        v_lshl_or_b32 v{vT2}, v{vT0}, 10, v{vT2}
        s_lshr_b32 s{sT0}, s{sW}, 1
        s_lshl_b32 s{sT0}, s{sT0}, 11
        s_and_b32 s{sT1}, s{sW}, 1
        s_lshl_b32 s{sT1}, s{sT1}, 8
        s_add_u32 s{sT0}, s{sT0}, s{sT1}
        s_add_u32 s{sT0}, s{sT0}, s{sKVPW}""")
        if it: a(f"s_add_u32 s{sT0}, s{sT0}, 0x100000")
        for p in range(4): a(f"v_cvt_pk_bf16_f32 v{EM+8+p}, v{ACCS+2*p}, v{ACCS+2*p+1}")
        a(f"v_permlane32_swap_b32 v{EM+8}, v{EM+10}\nv_permlane32_swap_b32 v{EM+9}, v{EM+11}")
        a(f"buffer_store_dwordx4 {vr(EM+8,4)}, v{vT2}, s[4:7], s{sT0} offen sc1", tag="kvp")
        self.stamp("A kv stored")
        self.gemm_q(ACCK)
        a.wait(vm="kvp")
        a(f"s_add_u32 s{sT2}, s{sFKVPW}, {it*4096}")
        self.flag(sT2, 1, False)
        a("s_barrier")
        self.stamp("A q gemm+flag")
        self.wdma(sWB, 0, 7)
        self.feature_map(ACCK, PHQ, PHQ + 8)
        self.stamp("A phi_q")
        if it == 0:
            a(f"""v_and_b32 v{vT0}, 15, v0
            v_lshlrev_b32 v{vT0}, 2, v{vT0}
            s_lshl_b32 s{sT2}, s{sRB}, 7
            s_add_u32 s{sT2}, s{sT2}, {F_XCC}""")
            self.poll(vT0, sT2, 1)
            a(f"""v_cmp_ne_u32 vcc, s{sXCC}, v{vT3}
            s_cmp_eq_u64 vcc, 0
            s_cselect_b32 s{sFAST}, 1, 0""")
        a(f"""v_and_b32 v{vT0}, 31, v0
        v_lshlrev_b32 v{vT0}, 2, v{vT0}
        s_add_u32 s{sT2}, s{sFKVPR}, {it*4096}""")
        self.poll(vT0, sT2, 1)
        self.stamp("A kv poll")
        for r in range(16):
            a(f"s_add_u32 s{sT1}, s{sKVPR}, {it*0x100000 + 4096*r}")
            a(f"buffer_load_dwordx4 {vr(X+4*r,4)}, v{vL16}, s[4:7], s{sT1} offen sc1", tag=("p", r))
        self.wdma(sWB, 7, 12)
        for r in range(16):
            a.wait(vm=("p", r))
            for p in range(4):
                dst = (ACCV + 2 * p) if r == 0 else (ACCV + 8 + 2 * (p & 1))
                a(f"v_lshlrev_b32 v{dst}, 16, v{X+4*r+p}\nv_and_b32 v{dst+1}, 0xffff0000, v{X+4*r+p}")
                if r: a(f"v_pk_add_f32 {vr(ACCV+2*p,2)}, {vr(ACCV+2*p,2)}, {vr(dst,2)}")
        for p in range(4): a(f"v_cvt_pk_bf16_f32 v{EP+p}, v{ACCV+2*p}, v{ACCV+2*p+1}")
        a(f"""s_add_u32 s{sT0}, s{sM0W}, {L_KVS}
        v_add_u32 v{vA0}, s{sT0}, v{vL16}
        v_add_u32 v{vA0+1}, {L_KVS}, v{vL16}
        ds_write_b128 v{vA0}, {vr(EP,4)}
        s_waitcnt lgkmcnt(0)
        s_barrier""")
        self.stamp("A kv reduced")
        for k in range(4): a(f"ds_read_b128 {vr(EM+4*k,4)}, v{vA0+1} offset:{1024*k}", tag=("kvs", k))
        for k in range(4):
            a.wait(lg=("kvs", k))
            c = vr(ACCK, 16) if k else "0"
            a(f"v_mfma_f32_32x32x16_bf16 {vr(ACCK,16)}, {vr(EM+4*k,4)}, {vr(PHQ+4*k,4)}, {c}")
        self.bcast_up_rcp(ACCK + 12, 1e-6)
        self.publish_o(ACCK, layer)
        a.wait(vm="ost")
        self.flag(sFOW, layer, True)
        self.stamp("A o flag")
        self.wdma(sWB, 12, 16)
        self.wo_phase(layer, 0, lambda: self.wdma(sWB, 16, 21))
        self.addr_B()

    def wo_phase(self, layer, abase, background=None):
        a = self.a
        a(f"v_and_b32 v{vT0}, 3, v0\nv_lshlrev_b32 v{vT0}, 2, v{vT0}")
        a(f"s_lshl_b32 s{sT2}, s{sW}, 13\ns_add_u32 s{sT2}, s{sT2}, {L_OST}")
        a(f"v_add_u32 v{vA0}, {L_OST}, v{vL16}")
        self.poll(vT0, sFOR, layer)
        self.stamp("o poll")
        for i in range(8):
            if i % 4 == 0:
                a(f"s_add_u32 m0, s{sT2}, {1024*i}\ns_add_u32 s{sT1}, s{sORD}, {1024*i}")
            a(f"buffer_load_dwordx4 v{vL16}, s[4:7], s{sT1} offen offset:{1024*(i%4)} sc1 lds", tag="odma")
        if background: background()
        a.wait(vm="odma")
        a("s_barrier")
        self.stamp("o landed")
        Lskip = a.newlabel("woskip")
        a(f"s_cmp_eq_u32 s{sACT}, 0\ns_cbranch_scc1 {Lskip}")
        vm0 = list(a.vm)
        def rd(k): a(f"ds_read_b128 {vr(RING+4*(k%4),4)}, v{vA0} offset:{1024*k}", tag=("o", k))
        for k in range(3): rd(k)
        for k in range(32):
            a.wait(lg=("o", k))
            a(f"v_mfma_f32_32x32x16_bf16 {vr(XRES,16)}, {ar(abase+4*k,4)}, {vr(RING+4*(k%4),4)}, {vr(XRES,16)}")
            if k + 3 < 32: rd(k + 3)
        self.pack16(EP, XRES)
        if layer < 4:
            self.dual([f"buffer_store_dwordx4 {vr(EP,4)}, v{vL16}, s[4:7], s{sXWR} offen",
                       f"buffer_store_dwordx4 {vr(EP+4,4)}, v{vL16}, s[4:7], s{sXWR} offen offset:1024"], tag="xst")
            a("s_waitcnt vmcnt(0)")
            self.flag(sFXW, layer, True)
            a.label(Lskip)
            a("s_waitcnt vmcnt(0)")
            a("s_barrier")
            self.stamp("x flag")
            a(f"v_and_b32 v{vT0}, 15, v0\nv_min_u32 v{vT0}, 13, v{vT0}\nv_lshlrev_b32 v{vT0}, 2, v{vT0}")
            self.poll(vT0, sFXR, layer)
            self.stamp("x poll")
            self.x_loads(" sc1")
        else:
            a(f"""v_and_b32 v{vT0}, 31, v0
            v_mul_u32_u24 v{vT0}, 896, v{vT0}
            v_lshrrev_b32 v{vT1}, 5, v0
            v_lshl_add_u32 v{vT0}, v{vT1}, 4, v{vT0}
            v_permlane32_swap_b32 v{EP}, v{EP+2}
            v_permlane32_swap_b32 v{EP+1}, v{EP+3}
            v_permlane32_swap_b32 v{EP+4}, v{EP+6}
            v_permlane32_swap_b32 v{EP+5}, v{EP+7}
            buffer_store_dwordx4 {vr(EP,4)}, v{vT0}, s[8:11], s{sOUT} offen
            buffer_store_dwordx4 {vr(EP+4,4)}, v{vT0}, s[8:11], s{sOUT} offen offset:32""")
            a.label(Lskip)

    def set_negmax(self, src):
        a = self.a; q = QF + 24
        a(f"""v_xor_b32 v{vT0}, 0x80000000, v{src}
        v_and_b32 v{vT1}, 0xffff0000, v{vT0}
        v_sub_f32 v{vT0}, v{vT0}, v{vT1}
        v_and_b32 v{vT2}, 0xffff0000, v{vT0}
        v_sub_f32 v{vT0}, v{vT0}, v{vT2}
        v_lshrrev_b32 v{vT1}, 16, v{vT1}""")
        self.upper()
        a(f"v_or_b32 v{q+6}, v{vT1}, v{vT2}\nv_lshrrev_b32 v{q+7}, 16, v{vT0}")
        self.full()
    def share_q(self):
        a = self.a; q = QF + 24
        a(f"""s_lshl_b32 s{sT0}, s{sW}, 11
        s_add_u32 s{sT0}, s{sT0}, {L_QS}
        v_add_u32 v{vA0}, s{sT0}, v{vL16}
        ds_write_b128 v{vA0}, {vr(q,4)}
        ds_write_b128 v{vA0}, {vr(q+4,4)} offset:1024""")
        for j in range(3):
            a(f"""s_add_u32 s{sT0}, s{sW}, {j+1}
            s_and_b32 s{sT0}, s{sT0}, 3
            s_lshl_b32 s{sT1}, s{sT0}, 11
            s_add_u32 s{sT1}, s{sT1}, {L_QS}
            v_add_u32 v{vA0+1+j}, s{sT1}, v{vL16}
            s_mul_i32 s{sT0}, s{sT0}, 12288
            s_add_u32 s{sT0}, s{sT0}, {L_ORED + 4096*j}
            v_add_u32 v{ADR+3+j}, s{sT0}, v{vL16}""")
        a("s_waitcnt lgkmcnt(0)\ns_barrier")
        for j in range(3):
            a(f"ds_read_b128 {vr(QF+8*j,4)}, v{vA0+1+j}", tag=("q", j))
            a(f"ds_read_b128 {vr(QF+8*j+4,4)}, v{vA0+1+j} offset:1024", tag=("q", j))
    def kv_load(self, it, i):
        a = self.a; b = KVB[i % 4]
        a(f"s_xor_b32 s{sT2}, s{sKVO}, {(i << 14) + it*0x400000 if False else (i << 14)}")
        if it: a(f"s_add_u32 s{sT2}, s{sT2}, 0x400000")
        for f in range(4):
            a(f"buffer_load_dwordx4 {vr(b+4*f,4)}, v{vL16}, s[4:7], s{sT2} offen offset:{1024*f} sc1", tag=("K" if f < 2 else "V", i))

    def layer_B(self, it):
        a = self.a; layer = 2 * it + 2
        KF = KVB[0]; VF = KF + 8
        self.gemm_kv()
        self.stamp("B gemm kv")
        self.stats()
        self.scale16(ACCV, vRS)
        self.scale16(ACCK, vRS)
        self.upper()
        a(f"v_mov_b32 v{ACCV+12}, 1.0\nv_mov_b32 v{ACCK+12}, 1.0\nv_mov_b32 v{ACCK+13}, 1.0\nv_mov_b32 v{ACCK+14}, 1.0")
        self.full()
        self.pack16(EP, ACCV)
        for j in range(4):
            if j: a(f"v_xor_b32 v{vA0}, {16*j}, v{ADR}")
            a(f"ds_write_b64 v{vA0 if j else ADR}, {vr(EP+2*j,2)}", tag="vt")
        self.pack16(KF, ACCK)
        a(f"s_add_u32 s{sT2}, s{sKVO}, {it*0x400000}")
        a.wait(lg="vt")
        for f in range(2):
            for r in range(2):
                a(f"ds_read_b64_tr_b16 {vr(VF+4*f+2*r,2)}, v{ADR+1+r} offset:{1024*f}", tag="vtr")
        a(f"buffer_store_dwordx4 {vr(KF,4)}, v{vL16}, s[4:7], s{sT2} offen sc1", tag="kvst")
        a(f"buffer_store_dwordx4 {vr(KF+4,4)}, v{vL16}, s[4:7], s{sT2} offen offset:1024 sc1", tag="kvst")
        a.wait(lg="vtr")
        a(f"buffer_store_dwordx4 {vr(VF,4)}, v{vL16}, s[4:7], s{sT2} offen offset:2048 sc1", tag="kvst")
        a(f"buffer_store_dwordx4 {vr(VF+4,4)}, v{vL16}, s[4:7], s{sT2} offen offset:3072 sc1", tag="kvst")
        self.stamp("B kv stored")
        self.gemm_q(ACCK)
        a.wait(vm="kvst")
        a(f"s_add_u32 s{sT2}, s{sFKVW}, {it*8192}")
        self.flag(sT2, 1, False)
        self.stamp("B q gemm+flag")
        q = QF + 24
        self.scale16(ACCK, vRS)
        self.pack16(q, ACCK)
        a(f"v_mfma_f32_32x32x16_bf16 {vr(ACCV,16)}, {vr(KF,4)}, {vr(q,4)}, 0")
        a(f"v_mfma_f32_32x32x16_bf16 {vr(ACCV,16)}, {vr(KF+4,4)}, {vr(q+4,4)}, {vr(ACCV,16)}")
        for r in range(12): a(f"v_mov_b32 v{OA+r}, 0")
        self.tree3("v_max3_f32", vT3, list(range(ACCV, ACCV + 16)))
        a(f"""v_mov_b32 v{vT2}, v{vT3}
        v_permlane32_swap_b32 v{vT3}, v{vT2}
        v_max_f32 v{vT3}, v{vT3}, v{vT2}""")
        self.set_negmax(vT3)
        self.share_q()
        for r in range(12, 64): a(f"v_mov_b32 v{OA+r}, 0")
        self.stamp("B q shared")
        a(f"""v_and_b32 v{vT0}, 15, v0
        v_lshlrev_b32 v{vT0}, 2, v{vT0}
        s_add_u32 s{sT2}, s{sFKVR}, {it*8192}""")
        self.poll(vT0, sT2, 1)
        self.stamp("B kv poll")
        for i in (1, 2, 3): self.kv_load(it, i)
        self.attention(it)
        self.stamp("B attention")
        self.finish_attention(layer)
        a.wait(vm="ost")
        self.flag(sFOW, layer, True)
        self.stamp("B o flag")
        self.wo_phase(layer, 128)
        if layer < 4: self.addr_A()

    def attention(self, it):
        a = self.a
        def qk(n, part):
            i, j = divmod(n, 4); s = SB[n % 3]; k = KVB[i % 4] + 4 * part
            if part == 0:
                if j == 0 and i: a.wait(vm=("K", i))
                if i == 0 and j < 3: a.wait(lg=("q", j))
            c = vr(s, 16) if part else "0"
            a(f"v_mfma_f32_32x32x16_bf16 {vr(s,16)}, {vr(k,4)}, {vr(QF+8*j+4*part,4)}, {c}")
        def pv(n, part):
            i, j = divmod(n, 4); s = SB[n % 3] + 8 * part; v = KVB[i % 4] + 8 + 4 * part
            if part == 0 and j == 0 and i: a.wait(vm=("V", i))
            a(f"v_smfmac_f32_32x32x32_bf16 {vr(OA+16*j,16)}, {vr(v,4)}, {vr(s,8)}, v{vIDX}")
        def ex(n, g):
            s = SB[n % 3] + 4 * g
            for r in range(4): a(f"v_exp_f32 v{s+r}, v{s+r}")
        def owrite(j, qq):
            a(f"ds_write_b128 v{ADR+3+j}, {vr(OA+16*j+4*qq,4)} offset:{1024*qq}", tag="ored")
        bg = []
        if it == 0:
            for k in range(0, 32, 2): bg.append(lambda k=k: self.wo_load(sWOB, 128, k, k + 2, tag="bg"))
            for i in range(21): bg.append(lambda i=i: self.wdma(sWA, i, i + 1, tag="bg"))
        a.align(3)
        qk(0, 0); qk(0, 1); qk(1, 0); qk(1, 1)
        for n in range(64):
            i, j = divmod(n, 4)
            ex(n, 0)
            if n: pv(n - 1, 1)
            if j == 0 and 1 <= i <= 12: self.kv_load(it, i + 3)
            elif n >= 8 and bg and j: bg.pop(0)()
            if n >= 62: owrite(n - 62, 0)
            ex(n, 1)
            if n + 2 < 64: qk(n + 2, 0)
            if n >= 62: owrite(n - 62, 1)
            ex(n, 2)
            pv(n, 0)
            if n >= 62: owrite(n - 62, 2)
            ex(n, 3)
            if n + 2 < 64: qk(n + 2, 1)
            if n >= 62: owrite(n - 62, 3)
        pv(63, 1)
        assert not bg
        for qq in range(4): owrite(2, qq)

    def finish_attention(self, layer):
        a = self.a; o = OA + 48
        a(f"""s_mul_i32 s{sT0}, s{sW}, 12288
        s_add_u32 s{sT0}, s{sT0}, {L_ORED}
        v_add_u32 v{vA0}, s{sT0}, v{vL16}
        s_waitcnt lgkmcnt(0)
        s_barrier""")
        for j in range(3):
            for qq in range(4):
                a(f"ds_read_b128 {vr(OA+16*j+4*qq,4)}, v{vA0} offset:{4096*j+1024*qq}", tag=("or", j))
        for j in range(3):
            a.wait(lg=("or", j))
            for p in range(8):
                a(f"v_pk_add_f32 {vr(o+2*p,2)}, {vr(o+2*p,2)}, {vr(OA+16*j+2*p,2)}")
        self.bcast_up_rcp(o + 12)
        self.publish_o(o, layer)
        a("s_barrier")

    def finish(self):
        a = self.a
        if self.stamps:
            self.stamp("end")
            a(f"""s_lshl_b32 s{sT0}, s2, 2
            s_add_u32 s{sT0}, s{sT0}, s{sW}
            s_lshl_b32 s{sT0}, s{sT0}, 8
            s_add_u32 s{sT0}, s{sT0}, {DBG}
            v_lshlrev_b32 v{vT0}, 2, v0
            buffer_store_dword v7, v{vT0}, s[4:7], s{sT0} offen""")
        a.label(f"{self.name}_end")
        a("s_endpgm")

    def build(self):
        self.startup()
        for it in range(2):
            self.layer_A(it)
            self.layer_B(it)
        self.finish()
        return self.a.text()
```

```python
from asmlib import *
from layout import *
import struct
def f2u(x): return struct.unpack("<I", struct.pack("<f", x))[0]

def srd(a, d, ptr, size):
    a(f"""s_mov_b32 s{d}, s{ptr}
    s_mov_b32 s{d+1}, s{ptr+1}
    s_mov_b32 s{d+2}, {size}
    s_mov_b32 s{d+3}, 0x00020000""")

def identity_b(a, vt, vb):
    for sub in range(2):
        for p in range(4):
            d0 = 16 * sub + 2 * p
            r = vb + 4 * sub + p
            a(f"v_cmp_eq_u32 vcc, {d0}, v{vt}")
            a(f"v_cndmask_b32 v{r}, 0, v10, vcc")
            a(f"v_cmp_eq_u32 vcc, {d0+1}, v{vt}")
            a(f"v_cndmask_b32 v{r}, v{r}, v11, vcc")

def gen_pre(name):
    a = Asm()
    a.label(name)
    a(f"""s_cmp_ge_u32 s2, 256
    s_cbranch_scc1 {name}_end
    s_load_dwordx8 s[20:27], s[0:1], 0
    s_load_dwordx4 s[28:31], s[0:1], 40
    s_load_dwordx2 s[32:33], s[0:1], 72
    v_and_b32 v1, 63, v0
    v_lshrrev_b32 v2, 6, v0
    v_and_b32 v3, 31, v0
    v_readfirstlane_b32 s14, v2
    v_bfe_u32 v4, v0, 5, 1
    v_lshlrev_b32 v5, 4, v1
    v_mov_b32 v10, 0x3f80
    v_mov_b32 v11, 0x3f800000
    s_waitcnt lgkmcnt(0)""")
    srd(a, 4, 32, WS_BYTES)
    a(f"""s_cmp_lt_u32 s2, 96
    s_cbranch_scc1 {name}_w
    s_cmp_lt_u32 s2, 124
    s_cbranch_scc1 {name}_wo
    s_cmp_lt_u32 s2, 188
    s_cbranch_scc1 {name}_x
    s_cmp_lt_u32 s2, 204
    s_cbranch_scc0 {name}_end""")
    a(f"""s_sub_u32 s3, s2, 188
    s_lshl_b32 s3, s3, 12
    s_add_u32 s3, s3, {FLAGS}
    v_lshlrev_b32 v6, 4, v0
    v_mov_b32 v12, 0
    v_mov_b32 v13, 0
    v_mov_b32 v14, 0
    v_mov_b32 v15, 0
    buffer_store_dwordx4 v[12:15], v6, s[4:7], s3 offen
    s_endpgm""")
    a.flush_hist(); a.vm = []
    a.label(f"{name}_x")
    srd(a, 8, 20, S * D * 2)
    a(f"""s_sub_u32 s3, s2, 124
    s_mul_i32 s16, s3, {32*896}
    s_mul_i32 s17, s14, {7*32}
    s_add_u32 s16, s16, s17
    v_mul_u32_u24 v6, 896, v3
    v_lshl_add_u32 v6, v4, 4, v6""")
    for i in range(7):
        a(f"buffer_load_dwordx4 {vr(16+4*i,4)}, v6, s[8:11], s16 offen offset:{32*i}", tag=("x", i))
    a(f"""s_mul_i32 s17, s3, 28672
    s_mul_i32 s18, s14, {7*1024}
    s_add_u32 s17, s17, s18
    s_add_u32 s17, s17, {XF}""")
    for i in range(7):
        b = 16 + 4 * i
        a.wait(vm=("x", i))
        a(f"v_permlane32_swap_b32 v{b}, v{b+2}")
        a(f"v_permlane32_swap_b32 v{b+1}, v{b+3}")
        if i == 4: a("s_add_u32 s17, s17, 4096")
        a(f"buffer_store_dwordx4 {vr(b,4)}, v5, s[4:7], s17 offen offset:{1024*(i%4)}")
    a("s_endpgm")
    a.flush_hist(); a.vm = []
    a.label(f"{name}_wo")
    a(f"""s_sub_u32 s3, s2, 96
    s_cmp_ge_u32 s3, 14
    s_cselect_b32 s8, s30, s26
    s_cselect_b32 s9, s31, s27
    s_mov_b32 s18, {WO_A}
    s_cmov_b32 s18, {WO_B}
    s_cselect_b32 s19, 14, 0
    s_sub_u32 s3, s3, s19
    s_mov_b32 s10, {D*D*2}
    s_mov_b32 s11, 0x00020000
    s_mul_i32 s16, s14, {4*28*896}
    s_lshl_b32 s17, s3, 6
    s_add_u32 s16, s16, s17
    v_mul_u32_u24 v6, 896, v3
    v_lshl_add_u32 v6, v4, 4, v6
    v_mov_b32 v7, 0x10000000
    v_cmp_gt_u32 vcc, 28, v3
    v_cndmask_b32 v6, v7, v6, vcc""")
    for i in range(4):
        for sub in range(2):
            a(f"buffer_load_dwordx4 {vr(32+8*i+4*sub,4)}, v6, s[8:11], s16 offen offset:{32*sub}", tag=("w", i))
        a(f"s_add_u32 s16, s16, {28*896}")
    a("v_lshlrev_b32 v7, 3, v4\nv_sub_u32 v7, v3, v7")
    identity_b(a, 7, 16)
    a(f"""s_lshl_b32 s17, s3, 15
    s_add_u32 s17, s17, s18
    s_lshl_b32 s18, s14, 13
    s_add_u32 s17, s17, s18""")
    for i in range(4):
        d = 64 + 16 * i
        a.wait(vm=("w", i))
        a(f"v_mfma_f32_32x32x16_bf16 {vr(d,16)}, {vr(32+8*i,4)}, v[16:19], 0")
        a(f"v_mfma_f32_32x32x16_bf16 {vr(d,16)}, {vr(36+8*i,4)}, v[20:23], {vr(d,16)}")
    for i in range(4):
        d = 64 + 16 * i
        for p in range(8):
            a(f"v_cvt_pk_bf16_f32 v{128+8*i+p}, v{d+2*p}, v{d+2*p+1}")
        if i == 2: a("s_add_u32 s17, s17, 4096")
        a(f"buffer_store_dwordx4 {vr(128+8*i,4)}, v5, s[4:7], s17 offen offset:{2048*(i%2)}")
        a(f"buffer_store_dwordx4 {vr(132+8*i,4)}, v5, s[4:7], s17 offen offset:{2048*(i%2)+1024}")
    a("s_endpgm")
    a.flush_hist(); a.vm = []
    a.label(f"{name}_w")
    a(f"""s_cmp_ge_u32 s2, 48
    s_cselect_b32 s8, s28, s22
    s_cselect_b32 s9, s29, s23
    s_mov_b32 s18, {WF_A}
    s_cmov_b32 s18, {WF_B}
    s_cselect_b32 s19, 48, 0
    s_cselect_b32 s34, 1, 0
    s_sub_u32 s3, s2, s19
    s_mov_b32 s10, {D*3*D*2}
    s_mov_b32 s11, 0x00020000
    s_mul_i32 s12, s3, 43
    s_lshr_b32 s12, s12, 7
    s_mul_i32 s13, s12, 3
    s_sub_u32 s13, s3, s13
    s_add_u32 s15, s13, 1
    s_cmp_eq_u32 s15, 3
    s_cselect_b32 s15, 0, s15
    s_mul_i32 s15, s15, 896
    s_mul_i32 s16, s12, 56
    s_add_u32 s16, s16, s15
    s_mul_i32 s15, s14, {32*2688}
    s_add_u32 s16, s16, s15
    v_mul_u32_u24 v6, 2688, v3
    v_lshl_add_u32 v6, v4, 4, v6""")
    for i in range(4):
        for sub in range(2):
            a(f"buffer_load_dwordx4 {vr(32+8*i+4*sub,4)}, v6, s[8:11], s16 offen offset:{32*sub}", tag=("w", i))
        a(f"s_add_u32 s16, s16, {4*32*2688}")
    a(f"""s_mov_b32 s35, {f2u(1.0)}
    s_cmp_eq_u32 s34, 0
    s_mov_b32 s36, {f2u(1.0)}
    s_cmov_b32 s36, {f2u(LOG2E)}
    s_mov_b32 s37, {f2u(LOG2E*DH**-0.5)}
    s_cmov_b32 s37, {f2u(LOG2E)}
    s_cmp_eq_u32 s13, 0
    s_cselect_b32 s35, s36, s35
    s_cmp_eq_u32 s13, 2
    s_cselect_b32 s35, s37, s35""")
    a(f"""s_mul_i32 s15, s12, 1568
    s_add_u32 s40, s24, s15
    s_addc_u32 s41, s25, 0
    s_mov_b32 s42, 1568
    s_mov_b32 s43, 0x00020000
    s_cmp_eq_u32 s34, 1
    s_cbranch_scc1 {name}_wid
    s_cmp_eq_u32 s13, 1
    s_cbranch_scc1 {name}_wid""")
    a(f"""v_mul_u32_u24 v7, {8*56}, v4
    v_lshl_add_u32 v7, v3, 1, v7
    v_mov_b32 v8, 0x10000000
    v_cmp_gt_u32 vcc, 28, v3
    v_cndmask_b32 v7, v8, v7, vcc""")
    for sub in range(2):
        for e in range(8):
            a(f"buffer_load_ushort v{64+8*sub+e}, v7, s[40:43], 0 offen offset:{(16*sub+e)*56}", tag="phi")
    a.wait(vm="phi")
    for p in range(8):
        a(f"v_lshl_or_b32 v{16+p}, v{64+2*p+1}, 16, v{64+2*p}")
    a(f"s_branch {name}_wb")
    a.label(f"{name}_wid")
    a("""v_lshlrev_b32 v7, 3, v4
    v_sub_u32 v7, v3, v7
    v_mov_b32 v8, 1000
    v_cmp_gt_u32 vcc, 28, v3
    v_cndmask_b32 v7, v8, v7, vcc""")
    identity_b(a, 7, 16)
    a.label(f"{name}_wb")
    a("s_waitcnt vmcnt(0)\ns_nop 1")
    for i in range(4):
        d = 64 + 16 * i
        a(f"v_mfma_f32_32x32x16_bf16 {vr(d,16)}, {vr(32+8*i,4)}, v[16:19], 0")
        a(f"v_mfma_f32_32x32x16_bf16 {vr(d,16)}, {vr(36+8*i,4)}, v[20:23], {vr(d,16)}")
    a("v_add_f32 v12, v64, v65")
    for r in range(66, 128): a(f"v_add_f32 v12, v12, v{r}")
    a("""v_mov_b32 v13, v12
    v_permlane32_swap_b32 v12, v13
    v_add_f32 v12, v12, v13
    v_lshlrev_b32 v13, 2, v0
    ds_write_b32 v13, v12
    s_waitcnt lgkmcnt(0)
    s_barrier
    v_lshlrev_b32 v13, 2, v1
    ds_read_b32 v24, v13
    ds_read_b32 v25, v13 offset:256
    ds_read_b32 v26, v13 offset:512
    ds_read_b32 v27, v13 offset:768
    s_waitcnt lgkmcnt(0)
    v_add_f32 v24, v24, v25
    v_add_f32 v26, v26, v27
    v_add_f32 v24, v24, v26""")
    a(f"""v_mul_f32 v24, {f2u(-1.0/D)}, v24
    v_mul_f32 v24, s35, v24
    s_cmp_eq_u32 s13, 0
    s_cselect_b32 s36, 28, 99
    v_cmp_eq_u32 vcc, s36, v3
    v_cndmask_b32 v24, v24, v11, vcc
    s_mul_i32 s17, s3, 28672
    s_add_u32 s17, s17, s18
    s_lshl_b32 s18, s14, 11
    s_add_u32 s17, s17, s18""")
    for i in range(4):
        d = 64 + 16 * i
        if i == 3:
            a(f"s_cmp_ge_u32 s14, 2\ns_cbranch_scc1 {name}_end")
        for r in range(16):
            a(f"v_fma_f32 v{d+r}, v{d+r}, s35, v24")
        for p in range(8):
            a(f"v_cvt_pk_bf16_f32 v{128+8*i+p}, v{d+2*p}, v{d+2*p+1}")
        a(f"buffer_store_dwordx4 {vr(128+8*i,4)}, v5, s[4:7], s17 offen")
        a(f"buffer_store_dwordx4 {vr(132+8*i,4)}, v5, s[4:7], s17 offen offset:1024")
        a(f"s_add_u32 s17, s17, 8192")
    a.label(f"{name}_end")
    a("s_endpgm")
    return a.text()
```

```python
import sys
from pre import gen_pre
from mainker import Gen
from layout import *
NAME = "interleave_layers__linear_kernel_hedgehog__mha_block__prompt"
def kd(name, vgpr, accum, sgpr):
    return f""".amdhsa_kernel {name}
  .amdhsa_next_free_vgpr {vgpr}
  .amdhsa_next_free_sgpr {sgpr}
  .amdhsa_accum_offset {accum}
  .amdhsa_group_segment_fixed_size 0
  .amdhsa_kernarg_size 80
  .amdhsa_user_sgpr_count 2
  .amdhsa_user_sgpr_kernarg_segment_ptr 1
  .amdhsa_system_sgpr_workgroup_id_x 1
.end_amdhsa_kernel
"""
def build(stamps=False, log=False):
    ref = open(f"cdna_kernels/{NAME}.s.ref").read().split("\n")
    head = [l for l in ref if l.startswith(";") and "@launch" not in l and "Override" not in l and "grid=ceil" not in l]
    g = Gen(NAME + "_kernel", stamps=stamps); g.a.log_nops = log
    main = g.build()
    t = "\n".join(head) + "\n"
    t += f"; @launch kernel=prep_kernel grid=(256,1,1) block=(256,1,1) lds=1024\n"
    t += f"; @launch kernel={NAME}_kernel grid=(256,1,1) block=(256,1,1) lds={LDS_BYTES}\n"
    t += '.amdgcn_target "amdgcn-amd-amdhsa--gfx950"\n.text\n'
    for n, body in (("prep_kernel", gen_pre("prep_kernel")), (NAME + "_kernel", main)):
        t += f".globl {n}\n.p2align 8\n.type {n},@function\n" + body
    t += '.section .rodata,"a"\n.p2align 6\n' + kd("prep_kernel", 160, 160, 64) + ".p2align 6\n" + kd(NAME + "_kernel", 512, 256, 96)
    return t, g
if __name__ == "__main__":
    stamps = "--stamps" in sys.argv
    t, g = build(stamps, "--log" in sys.argv)
    out = [x for x in sys.argv[1:] if not x.startswith("--")]
    p = out[0] if out else f"cdna_kernels/{NAME}.s"
    open(p, "w").write(t)
    if stamps: open(p + ".names", "w").write("\n".join(g.names))
    print("written", p, len(t), "bytes; nop states", g.a.nops)
```

```python
import re

TRANS = ("v_exp_", "v_log_", "v_rcp_", "v_rsq_", "v_sqrt_", "v_sin_", "v_cos_")

def parse_regs(tok):
    tok = tok.strip()
    tok = tok.lstrip("-")
    m = re.fullmatch(r"abs\((.*)\)", tok)
    if m: tok = m.group(1)
    tok = tok.strip("|")
    m = re.fullmatch(r"([vas])(\d+)", tok)
    if m: return {(m.group(1), int(m.group(2)))}
    m = re.fullmatch(r"([vas])\[(\d+):(\d+)\]", tok)
    if m: return {(m.group(1), i) for i in range(int(m.group(2)), int(m.group(3)) + 1)}
    if tok == "vcc": return {("s", "vcc")}
    if tok == "exec": return {("s", "exec")}
    if tok == "m0": return {("s", "m0")}
    return set()

def split_ops(s):
    out, depth, cur = [], 0, ""
    for ch in s:
        if ch in "[(": depth += 1
        if ch in "])": depth -= 1
        if ch == "," and depth == 0:
            out.append(cur.strip()); cur = ""
        else: cur += ch
    if cur.strip(): out.append(cur.strip())
    return out

def mfma_passes(op):
    if "4x4x4" in op: return 2
    if "16x16x" in op: return 4
    return 8

class Ins:
    def __init__(self, text):
        self.text = text
        t = text.split(";")[0].strip()
        parts = t.split(None, 1)
        self.op = parts[0]
        rest = parts[1] if len(parts) > 1 else ""
        ops = split_ops(rest)
        self.mods = ""
        if ops:
            last = ops[-1].split()
            ops[-1] = last[0] if last else ""
            self.mods = " ".join(last[1:])
        self.ops = ops
        op = self.op
        R = [parse_regs(o) for o in ops]
        self.kind = "other"; self.w = set(); self.r = set()
        self.A = self.B = self.C = self.D = set()
        if op.startswith("v_mfma") or op.startswith("v_smfmac"):
            self.kind = "mfma"; self.passes = mfma_passes(op)
            self.D = R[0]; self.A = R[1]; self.B = R[2]
            if op.startswith("v_smfmac"):
                self.C = R[0]; self.B = self.B | R[3]
                self.cname = ops[0]
            else:
                self.C = R[3]; self.cname = ops[3]
            self.dname = ops[0]
            self.w = set(self.D); self.r = self.A | self.B | self.C
        elif op.startswith("v_"):
            self.kind = "trans" if op.startswith(TRANS) else "valu"
            if op.startswith("v_permlane") and "swap" in op:
                self.w = R[0] | R[1]; self.r = R[0] | R[1]
            elif op.startswith(("v_add_co", "v_sub_co", "v_addc_co", "v_subb_co")):
                self.w = R[0] | R[1]; self.r = set().union(*R[2:])
            elif op == "v_nop":
                pass
            else:
                self.w = set(R[0]); self.r = set().union(*R[1:]) if len(R) > 1 else set()
                if op.startswith(("v_fmac", "v_dot2c", "v_writelane")) or "dpp" in op or "row_" in self.mods or "quad_perm" in self.mods:
                    self.r |= R[0]
                if op.startswith("v_cndmask") and len(ops) == 3: self.r |= {("s", "vcc")}
        elif op.startswith("ds_"):
            self.kind = "ds"
            if op.startswith(("ds_read", "ds_bpermute", "ds_permute", "ds_swizzle")):
                self.w = R[0]; self.r = set().union(*R[1:])
            else:
                self.r = set().union(*R)
        elif op.startswith(("buffer_", "global_")):
            self.kind = "vmem"
            self.lds = "lds" in self.mods.split() or "load_lds" in op
            if op in ("buffer_inv", "buffer_wbl2"):
                pass
            elif "load" in op and not self.lds:
                self.w = R[0]; self.r = set().union(*R[1:])
            else:
                self.r = set().union(*R)
                if self.lds: self.r |= {("s", "m0")}
            self.wide_store = ("store" in op) and ("x4" in op or "x3" in op)
            if self.wide_store:
                self.data = R[0] if op.startswith("buffer_") else R[1]
        elif op.startswith("s_"):
            self.kind = "salu"
            if op.startswith(("s_cmp", "s_cbranch", "s_branch", "s_waitcnt", "s_barrier", "s_nop", "s_sleep", "s_endpgm", "s_setprio", "s_setpc")):
                self.r = set().union(*R) if R else set()
            else:
                self.w = set(R[0]) if R else set(); self.r = set().union(*R[1:]) if len(R) > 1 else set()
        self.states = 1
        if op == "s_nop": self.states = int(ops[0], 0) + 1

def need_states(p, c):
    n = 0
    vg = lambda s: {x for x in s if x[0] in "va"}
    sg = lambda s: {x for x in s if x[0] == "s"}
    pv = p.kind in ("valu", "trans")
    cv = c.kind in ("valu", "trans")
    if pv:
        pw = vg(p.w)
        if c.kind == "mfma" and pw & c.r: n = max(n, 2)
        if cv:
            if p.kind == "trans" and c.kind == "valu" and pw & c.r: n = max(n, 1)
            if c.op.startswith("v_permlane") and pw & c.r: n = max(n, 2)
            if ("dpp" in c.op or "row_" in c.mods or "quad_perm" in c.mods) and pw & c.r: n = max(n, 2)
            if c.op.startswith(("v_readlane", "v_readfirstlane")) and pw & c.r: n = max(n, 1)
            if ("op_sel" in p.mods and not p.op.startswith("v_pk")) or "sdwa" in p.op:
                if pw & (c.r | c.w): n = max(n, 1)
        sw = sg(p.w)
        if sw:
            if cv and sw & c.r:
                n = max(n, 4 if c.op.startswith(("v_readlane", "v_writelane")) else 2)
            if c.kind == "vmem" and sw & c.r: n = max(n, 5)
            if c.kind == "salu" and sw & c.r: n = max(n, 1)
    if p.kind == "mfma":
        P = p.passes
        t_ab = {2: 5, 4: 8, 8: 12, 16: 20}[P]
        if c.kind == "mfma":
            if p.D & (c.A | c.B): n = max(n, t_ab)
            if p.D & c.C:
                if c.cname == p.dname and c.passes == P: n = max(n, 2 if P == 2 else 0)
                else: n = max(n, {2: 4, 4: 6, 8: 10, 16: 18}[P])
            elif p.D & c.D: n = max(n, {2: 4, 4: 6, 8: 10, 16: 18}[P])
        elif c.kind in ("valu", "trans", "ds", "vmem"):
            if p.D & (c.r | c.w): n = max(n, t_ab)
            if cv and p.C & c.w: n = max(n, {2: 1, 4: 3, 8: 7, 16: 15}[P])
    if p.kind == "vmem" and getattr(p, "wide_store", False):
        if p.data & c.w: n = max(n, 2 if cv else 1)
    if p.kind == "salu" and ("s", "m0") in p.w and c.kind == "vmem" and c.lds: n = max(n, 1)
    return n

class Asm:
    def __init__(self):
        self.lines = []
        self.hist = []
        self.vm = []
        self.lg = []
        self.nops = 0
        self.uid = 0
        self.log_nops = False
        self.bg = []
        self.bg_every = 0
        self.bg_cnt = 0
        self.bg_hold = False
    def raw(self, s): self.lines.append(s)
    def comment(self, s): self.lines.append("    ; " + s)
    def label(self, name): self.lines.append(name + ":")
    def newlabel(self, base):
        self.uid += 1
        return f"L_{base}_{self.uid}"
    def flush_hist(self, states=0):
        self.hist = []
    def __call__(self, text, tag=None):
        for line in text.strip().split("\n"):
            line = line.strip()
            if not line or line.startswith(";"): continue
            self.one(line, tag)
    def one(self, line, tag=None):
        c = Ins(line)
        dist = 0; need = 0
        for p in reversed(self.hist):
            k = need_states(p, c) - dist
            if k > need: need = k; why = p
            dist += p.states
            if dist > 24: break
        if need > 0:
            if self.log_nops: print("nop", need, "between", why.text, "->", line)
            rem = need
            while rem > 0:
                k = min(rem, 16)
                nop = Ins(f"s_nop {k-1}")
                self.lines.append("    " + nop.text); self.hist.append(nop); rem -= k
            self.nops += need
        self.lines.append("    " + line)
        self.hist.append(c)
        if len(self.hist) > 40: self.hist = self.hist[-40:]
        if c.kind == "vmem": self.vm.append(tag)
        elif c.kind == "ds": self.lg.append(tag)
        elif c.op == "s_waitcnt":
            m = re.search(r"vmcnt\((\d+)\)", line)
            if m:
                n = int(m.group(1)); self.vm = self.vm[len(self.vm) - n:] if n else []
            m = re.search(r"lgkmcnt\((\d+)\)", line)
            if m:
                n = int(m.group(1)); self.lg = self.lg[len(self.lg) - n:] if n else []
        assert len(self.vm) <= 63, "too many outstanding vmem ops"
        if self.bg and self.bg_every and not self.bg_hold and c.kind in ("valu", "trans", "mfma"):
            self.bg_cnt += 1
            if self.bg_cnt >= self.bg_every:
                self.bg_cnt = 0
                self.bg_hold = True
                self.bg.pop(0)()
                self.bg_hold = False
    def background(self, items, every):
        assert not self.bg, "previous background work unfinished"
        self.bg = list(items); self.bg_every = every; self.bg_cnt = 0
    def bg_flush(self):
        self.bg_hold = True
        while self.bg: self.bg.pop(0)()
        self.bg_hold = False
    def _count_after(self, q, tag):
        idx = [i for i, t in enumerate(q) if t == tag]
        if not idx: return None
        return len(q) - 1 - idx[-1]
    def wait(self, vm=None, lg=None):
        parts = []
        if vm is not None:
            tags = vm if isinstance(vm, list) else [vm]
            ns = [self._count_after(self.vm, t) for t in tags]; ns = [n for n in ns if n is not None]
            if ns: parts.append(f"vmcnt({min(ns)})")
        if lg is not None:
            tags = lg if isinstance(lg, list) else [lg]
            ns = [self._count_after(self.lg, t) for t in tags]; ns = [n for n in ns if n is not None]
            if ns: parts.append(f"lgkmcnt({min(min(ns), 15)})")
        if parts: self.one("s_waitcnt " + " ".join(parts))
    def align(self, p2): self.lines.append(f"    .p2align {p2}")
    def text(self): return "\n".join(self.lines) + "\n"

def vr(a, n=1, k="v"):
    return f"{k}{a}" if n == 1 else f"{k}[{a}:{a+n-1}]"
def ar(a, n=1): return vr(a, n, "a")
def sr(a, n=1): return vr(a, n, "s")
```

```python
S, D, H, DH = 2048, 448, 16, 28
FLAGS = 0x000000
F_KVP = FLAGS
F_KV  = FLAGS + 0x2000
F_O   = FLAGS + 0x6000
F_X   = FLAGS + 0x8000
F_XCC = FLAGS + 0xA000
F_G1H = FLAGS + 0xB000
F_G1R = FLAGS + 0xB800
F_G2  = FLAGS + 0xC000
GEN   = FLAGS + 0xF000
WF_A = 0x010000
WF_B = 0x160000
WF_HEAD = 3 * 28 * 1024
WO_A = 0x2B0000
WO_B = 0x320000
SS   = 0x390000
CS   = 0x3B0000
XF   = 0x400000
OF   = 0x600000
KVP  = 0x800000
KV   = 0xA00000
DBG  = 0x1300000
WS_BYTES = 0x2000000
LOG2E = 1.4426950408889634
L_W = 0
L_S = 86016
L_PHI = L_S
L_VV = L_S + 16384
L_KVS = L_S + 24576
L_OST = L_S + 28672
L_VT = L_S + 53248
L_CS = L_S + 61440
L_QS = L_S + 69632
L_ORED = L_S
LDS_BYTES = 163840
```

```python
from asmlib import *
from layout import *
import struct
import os
OPT = set(os.environ.get('OPTS', '').split(','))

def f2u(x): return struct.unpack("<I", struct.pack("<f", x))[0]
def srd(a, d, ptr, size):
    a(f"""s_mov_b32 s{d}, s{ptr}
    s_mov_b32 s{d+1}, s{ptr+1}
    s_mov_b32 s{d+2}, {size}
    s_mov_b32 s{d+3}, 0x00020000""")

sRB, sH, sW, sFAST = 12, 13, 14, 16
sT0, sT1, sT2, sT3 = 17, 18, 19, 20
sXRD, sWA, sWB, sOWR, sORD, sXWR, sACT = 30, 31, 32, 33, 34, 35, 36
sKVPW, sKVPR, sKVO = 37, 38, 39
sFKVPW, sFKVPR, sFKVW, sFKVR, sFOW, sFOR, sFXW, sFXR = 40, 41, 42, 43, 44, 45, 46, 47
sWOA, sWOB, sM0W, sTO, sXCC = 48, 49, 50, 51, 52
sUP = 54
sTAG, sEXP, sSSW, sSSR, sC = 56, 57, 58, 59, 60
sST = 62
sSTB = 64
sOUT = 65
sXT = 66
sBG, sBG1, sKT, sRETRY = 67, 68, 69, 70
XPRE = int(os.environ.get('XPRE', 8))
vL16, vT0, vT1, vT2, vT3, vDUM = 1, 2, 3, 4, 5, 6
vIDX = 246
vFL = 9
vRS = 8
vC = 10
vA0 = 12
XRES = 16
X = 32
ACCK, ACCV = 144, 160
RING = 176
ACCS = 200
EP, EM = 208, 224
PHQ = 240
ADR = 248
QF, OA = 32, 64
SB = [128, 144, 160]
KVB = [224, 176, 192, 208]
vM, vPO = 240, 241
vQA = 242
KVPOLL_AT = 1
vSX = 198
CSR = 240

class Gen:
    def __init__(self, name, stamps=False, stop_after=None):
        self.a = Asm(); self.name = name; self.stamps = stamps; self.nst = 0
        self.stop_after = stop_after
        self.stubs = []; self.slow = []; self.lmax = 2.0 ** 64
        self.wob_done = int(os.environ.get('WOBQ', 0)); self.wa_left = []
    def stamp(self, label, again=False):
        if not self.stamps: return
        a = self.a
        names = getattr(self, "names", [])
        if again:
            a(f"s_mem{'real' if self.stamps == 'real' else ''}time s[{sST}:{sST+1}]\ns_waitcnt lgkmcnt(0)")
            a(f"v_writelane_b32 v7, s{sST}, {names.index(label)}")
            return
        if self.stamps == "real":
            a(f"s_memrealtime s[{sST}:{sST+1}]\ns_waitcnt lgkmcnt(0)")
        else:
            a(f"s_memtime s[{sST}:{sST+1}]\ns_waitcnt lgkmcnt(0)")
        a(f"v_writelane_b32 v7, s{sST}, {self.nst}")
        self.names = getattr(self, "names", []) + [label]
        self.nst += 1
    def upper(self):
        self.a.bg_hold = True; self.a(f"s_mov_b64 exec, s[{sUP}:{sUP+1}]")
    def full(self):
        self.a("s_mov_b64 exec, -1"); self.a.bg_hold = False
    def stub(self, label, emit):
        self.stubs.append((label, emit))
    def retry(self, L, sleep=0):
        a = self.a
        Lr = a.newlabel("retry")
        a(f"s_cbranch_vccnz {Lr}")
        self.stub(Lr, lambda: a(f"""{"s_sleep " + str(sleep) if sleep else ""}
        s_sub_u32 s{sTO}, s{sTO}, 1
        s_cmp_lg_u32 s{sTO}, 0
        s_cbranch_scc1 {L}
        s_endpgm"""))
    def poll(self, voff, soff, step, sleep=0):
        a = self.a
        L = a.newlabel("poll")
        e = sTAG
        if step: a(f"s_add_u32 s{sEXP}, s{sTAG}, {step}"); e = sEXP
        so = f"s{soff}" if soff is not None else "0"
        a.label(L)
        a(f"""buffer_load_dword v{vT3}, v{voff}, s[4:7], {so} offen sc1
        s_waitcnt vmcnt(0)
        v_cmp_ne_u32 vcc, s{e}, v{vT3}""")
        self.retry(L, sleep)
    def dual(self, lines, tag=None):
        a = self.a
        Ls = a.newlabel("slow"); Lj = a.newlabel("join")
        a(f"s_cmp_eq_u32 s{sFAST}, 1\ns_cbranch_scc0 {Ls}")
        for l in lines: a(l, tag=tag)
        a.label(Lj)
        def emit():
            for l in lines: a(l + " sc1")
            a(f"s_branch {Lj}")
        self.stub(Ls, emit)
    def flag_prep(self, step):
        a = self.a
        if step: a(f"s_add_u32 s{sEXP}, s{sTAG}, {step}\nv_mov_b32 v{vFL}, s{sEXP}")
        else: a(f"v_mov_b32 v{vFL}, s{sTAG}")
    def flag(self, soff, intra):
        a = self.a
        a.bg_hold = True
        a(f"s_mov_b64 exec, 1")
        l = f"buffer_store_dword v{vFL}, off, s[4:7], s{soff}"
        if intra: self.dual([l], tag="flag")
        else: a(l + " sc1", tag="flag")
        self.full()
    def wdma(self, src, i0, i1, tag="wdma"):
        a = self.a
        for i in range(i0, i1):
            a(f"s_add_u32 m0, s{sM0W}, {4096*i}")
            a(f"s_add_u32 s{sBG}, s{src}, {4096*i}")
            a(f"buffer_load_dwordx4 v{vL16}, s[4:7], s{sBG} offen sc1 lds", tag=tag)
    def wo_load(self, src, abase, k0, k1, tag="wo"):
        a = self.a
        for k in range(k0, k1):
            if k % 4 == 0: a(f"s_add_u32 s{sBG1}, s{src}, {4096*(k//4)}")
            a(f"buffer_load_dwordx4 {ar(abase+4*k,4)}, v{vL16}, s[4:7], s{sBG1} offen offset:{1024*(k%4)} sc1", tag=tag)
    def touch_ox(self, vt):
        a = self.a
        a(f"""v_and_b32 v{vt}, 15, v0
        v_lshlrev_b32 v{vt}, 7, v{vt}
        v_mov_b32 v{vt+1}, s{sOWR}
        v_mov_b32 v{vt+2}, s{sXWR}
        v_cndmask_b32 v{vt+1}, v{vt+1}, v{vt+2}, s[{sUP}:{sUP+1}]
        v_add_u32 v{vt}, v{vt}, v{vt+1}
        v_writelane_b32 v{vt}, s{sSSW}, 16
        buffer_load_dword v{vDUM}, v{vt}, s[4:7], 0 offen sc1""", tag="touch")
    def ss_loads(self):
        a = self.a
        def first():
            a(f"""v_lshrrev_b32 v{vT0}, 5, v0
            v_mul_u32_u24 v{vT0}, {7*128}, v{vT0}
            v_and_b32 v{vT1}, 31, v0
            v_lshl_add_u32 v{vT0}, v{vT1}, 2, v{vT0}""")
        def ld(i):
            if i == 0: first()
            a(f"buffer_load_dword v{ACCS+i}, v{vT0}, s[4:7], s{sSSR} offen offset:{128*i} sc1", tag="ss")
        return [(lambda i=i: ld(i)) for i in range(7)]
    def publish_x(self, step, direct=False):
        a = self.a
        dual = self.dual
        if direct: dual = lambda lines, tag: [a(l + " sc1", tag=tag) for l in lines]
        dual([f"buffer_store_dwordx4 {vr(EP,4)}, v{vL16}, s[4:7], s{sXWR} offen",
                   f"buffer_store_dwordx4 {vr(EP+4,4)}, v{vL16}, s[4:7], s{sXWR} offen offset:1024"], tag="xst")
        a(f"v_pk_mul_f32 {vr(vT0,2)}, {vr(XRES,2)}, {vr(XRES,2)}")
        a(f"v_pk_mul_f32 {vr(vT2,2)}, {vr(XRES+2,2)}, {vr(XRES+2,2)}")
        for p in range(2, 8):
            t = vT0 + 2 * (p & 1)
            a(f"v_pk_fma_f32 {vr(t,2)}, {vr(XRES+2*p,2)}, {vr(XRES+2*p,2)}, {vr(t,2)}")
        a(f"""v_pk_add_f32 {vr(vT0,2)}, {vr(vT0,2)}, {vr(vT2,2)}
        v_add_f32 v{vT0}, v{vT0}, v{vT1}
        v_mov_b32 v{vT1}, v{vT0}
        v_and_b32 v{vT2}, 31, v0
        v_lshlrev_b32 v{vT2}, 2, v{vT2}
        v_permlane32_swap_b32 v{vT0}, v{vT1}
        v_add_f32 v{vT0}, v{vT0}, v{vT1}""")
        dual([f"buffer_store_dword v{vT0}, v{vT2}, s[4:7], s{sSSW} offen"], tag="xst")
        self.flag_prep(step)
    def touch_w(self, src, vt):
        a = self.a
        a(f"""s_and_b32 s{sBG}, s{sRB}, 1
        s_lshl_b32 s{sBG}, s{sBG}, 2
        s_add_u32 s{sBG}, s{sBG}, s{sW}
        s_mul_i32 s{sBG}, s{sBG}, {84*128}
        s_add_u32 s{sBG}, s{sBG}, s{src}
        s_sub_u32 s{sBG}, s{sBG}, s{sM0W}
        v_lshlrev_b32 v{vt}, 7, v0
        buffer_load_dword v{vDUM}, v{vt}, s[4:7], s{sBG} offen
        v_min_u32 v{vt}, {19*128}, v{vt}
        s_add_u32 s{sBG}, s{sBG}, 8192
        buffer_load_dword v{vDUM}, v{vt}, s[4:7], s{sBG} offen""", tag="touch")
    def x_loads(self, k0, k1):
        a = self.a
        for ks in range(k0, k1):
            if ks % 4 == 0: a(f"s_add_u32 s{sXT}, s{sXRD}, {4096*(ks//4)}")
            a(f"buffer_load_dwordx4 {vr(X+4*ks,4)}, v{vL16}, s[4:7], s{sXT} offen offset:{1024*(ks%4)} sc1", tag=("x", ks))

    def identity_b(self, vb):
        a = self.a; vt = vT0
        a(f"""v_lshlrev_b32 v{vt}, 3, v{vA0+1}
        v_sub_u32 v{vt}, v{vA0}, v{vt}
        v_mov_b32 v10, 0x3f80
        v_mov_b32 v11, 0x3f800000""")
        for sub in range(2):
            for p in range(4):
                d0 = 16 * sub + 2 * p; r = vb + 4 * sub + p
                a(f"""v_cmp_eq_u32 vcc, {d0}, v{vt}
                v_cmp_eq_u32 s[28:29], {d0+1}, v{vt}
                v_cndmask_b32 v{r}, 0, v10, vcc
                v_cndmask_b32 v{r}, v{r}, v11, s[28:29]""")

    def startup(self):
        a = self.a; n = self.name
        TL, TD, TP, TB, TG = 32, 64, 128, 160, 184
        a.label(n)
        a(f"""s_cmp_ge_u32 s2, 256
        s_cbranch_scc1 {n}_end
        s_load_dwordx8 s[72:79], s[0:1], 0
        s_load_dwordx4 s[80:83], s[0:1], 40
        s_load_dwordx2 s[84:85], s[0:1], 56
        s_load_dwordx2 s[86:87], s[0:1], 72""")
        if "nocode" not in OPT:
            a("s_getpc_b64 s[28:29]")
            a.label(f"{n}_pc")
            a(f"""s_lshr_b32 s{sT0}, s2, 3
            s_lshl_b32 s{sT0}, s{sT0}, 4
            s_add_u32 s{sT0}, s{sT0}, 128
            v_lshrrev_b32 v2, 1, v0
            v_lshrrev_b32 v3, 4, v0
            v_add_u32 v3, s{sT0}, v3
            v_and_b32 v4, 1, v0
            v_cmp_eq_u32 vcc, 1, v4
            v_cndmask_b32 v2, v2, v3, vcc
            v_lshlrev_b32 v2, 7, v2
            v_min_u32 v2, {n}_last-{n}_pc-4, v2
            global_load_dword v{vDUM}, v2, s[28:29]""")
        a(f"""v_lshrrev_b32 v2, 6, v0
        v_and_b32 v0, 63, v0
        v_readfirstlane_b32 s{sW}, v2
        v_lshlrev_b32 v{vL16}, 4, v0
        v_and_b32 v{vA0}, 31, v0
        v_lshrrev_b32 v{vA0+1}, 5, v0
        v_lshrrev_b32 v3, 2, v0
        v_mul_u32_u24 v{vA0+2}, 896, v3
        v_lshrrev_b32 v3, 4, v0
        v_xor_b32 v3, v3, v0
        v_and_b32 v3, 3, v3
        v_lshl_add_u32 v{vA0+2}, v3, 4, v{vA0+2}
        s_and_b32 s{sRB}, s2, 7
        s_lshl_b32 s{sRB}, s{sRB}, 1
        s_bfe_u32 s{sT0}, s2, 0x10003
        s_or_b32 s{sRB}, s{sRB}, s{sT0}
        s_lshr_b32 s{sH}, s2, 4
        s_lshl_b32 s{sM0W}, s{sW}, 10
        s_lshl_b32 s{sT0}, s{sRB}, 2
        s_add_u32 s{sT1}, s{sT0}, s{sW}
        s_lshr_b32 s{sT2}, s{sH}, 2
        s_add_u32 s{sT2}, s{sT2}, s{sT0}
        s_and_b32 s{sC}, s{sH}, 3
        s_lshl_b32 s{sC}, s{sC}, 2
        s_add_u32 s{sC}, s{sC}, s{sW}
        s_cmp_lt_u32 s{sC}, 14
        s_cselect_b32 s{sACT}, 1, 0
        s_min_u32 s{sC}, s{sC}, 13
        s_mul_i32 s{sOUT}, s{sT2}, {32*896}
        s_lshl_b32 s{sT3}, s{sC}, 6
        s_add_u32 s{sOUT}, s{sOUT}, s{sT3}
        s_mov_b32 s6, {WS_BYTES}
        s_mov_b32 s7, 0x00020000
        s_mov_b32 s10, {S*D*2}
        s_mov_b32 s11, 0x00020000
        s_mov_b32 s91, 0x00020000
        s_mov_b32 s94, {S*D*2}
        s_mov_b32 s95, 0x00020000
        s_mov_b32 s{sUP}, 0
        s_mov_b32 s{sUP+1}, -1
        s_mov_b32 s{sFAST}, 0
        s_mov_b32 s{sTO}, 0x400000""")
        a(f"""s_mul_i32 s{sXRD}, s{sT1}, 28672
        s_add_u32 s{sXRD}, s{sXRD}, {XF}
        s_lshl_b32 s{sSSR}, s{sT1}, 11
        s_add_u32 s{sSSR}, s{sSSR}, {SS}
        s_lshl_b32 s{sOWR}, s{sT1}, 4
        s_add_u32 s{sOWR}, s{sOWR}, s{sH}
        s_lshl_b32 s{sOWR}, s{sOWR}, 11
        s_add_u32 s{sOWR}, s{sOWR}, {OF}
        s_lshl_b32 s{sFOW}, s{sT1}, 7
        s_add_u32 s{sFXR}, s{sFOW}, {F_X}
        s_lshl_b32 s{sT3}, s{sH}, 2
        s_add_u32 s{sFOW}, s{sFOW}, s{sT3}
        s_add_u32 s{sFOW}, s{sFOW}, {F_O}
        s_lshl_b32 s{sORD}, s{sT2}, 15
        s_lshl_b32 s{sT3}, s{sW}, 13
        s_add_u32 s{sORD}, s{sORD}, s{sT3}
        s_add_u32 s{sORD}, s{sORD}, {OF}
        s_lshl_b32 s{sFOR}, s{sT2}, 7
        s_add_u32 s{sFXW}, s{sFOR}, {F_X}
        s_lshl_b32 s{sT3}, s{sW}, 4
        s_add_u32 s{sFOR}, s{sFOR}, s{sT3}
        s_add_u32 s{sFOR}, s{sFOR}, {F_O}
        s_mul_i32 s{sXWR}, s{sT2}, 28672
        s_lshl_b32 s{sT3}, s{sC}, 11
        s_add_u32 s{sXWR}, s{sXWR}, s{sT3}
        s_add_u32 s{sXWR}, s{sXWR}, {XF}
        s_lshl_b32 s{sSSW}, s{sT2}, 11
        s_lshl_b32 s{sT3}, s{sC}, 7
        s_add_u32 s{sSSW}, s{sSSW}, s{sT3}
        s_add_u32 s{sSSW}, s{sSSW}, {SS}
        s_lshl_b32 s{sT3}, s{sC}, 2
        s_add_u32 s{sFXW}, s{sFXW}, s{sT3}
        s_lshl_b32 s{sT3}, s{sC}, 15
        s_add_u32 s{sWOA}, s{sT3}, {WO_A}
        s_add_u32 s{sWOB}, s{sT3}, {WO_B}
        s_mul_i32 s{sT0}, s{sH}, {WF_HEAD}
        s_add_u32 s{sT0}, s{sT0}, s{sM0W}
        s_add_u32 s{sWA}, s{sT0}, {WF_A}
        s_add_u32 s{sWB}, s{sT0}, {WF_B}
        s_waitcnt lgkmcnt(0)
        s_load_dword s{sTAG}, s[86:87], {GEN}
        s_mov_b32 s4, s86
        s_mov_b32 s5, s87
        s_mov_b32 s8, s84
        s_mov_b32 s9, s85
        s_mov_b32 s92, s72
        s_mov_b32 s93, s73""")
        if self.stamps: a("v_mov_b32 v7, 0")
        self.stamp("start")
        LX, LT, LP = 114688, 122880, 139264
        vG, vR = vA0 + 2, TG
        def stage(srdq, voff, soff, m0base, imm, tag):
            a(f"s_add_u32 m0, s{m0base}, {imm}")
            a(f"buffer_load_dwordx4 v{voff}, s[{srdq}:{srdq+3}], s{soff} offen lds", tag=tag)
        a(f"""s_lshl_b32 s21, s{sW}, 11
        s_add_u32 s27, s21, {LP}
        s_add_u32 s21, s21, {LX}
        s_add_u32 s22, s{sOUT}, {16*896}
        s_lshl_b32 s3, s{sW}, 12
        s_add_u32 s3, s3, {LT}""")
        stage(92, vG, sOUT, 21, 0, "x0"); stage(92, vG, 22, 21, 1024, "x0")
        a(f"""s_lshl_b32 s15, s{sRB}, 2
        s_add_u32 s15, s15, s{sW}
        s_cmp_ge_u32 s15, 42
        s_cselect_b32 s88, s80, s74
        s_cselect_b32 s89, s81, s75
        s_cselect_b32 s22, 42, 0
        s_cselect_b32 s23, 1, 0
        s_sub_u32 s22, s15, s22
        s_mov_b32 s90, {D*3*D*2}
        v_lshrrev_b32 v{vT0}, 2, v0
        v_mul_u32_u24 v{vT0}, {2688-896}, v{vT0}
        v_add_u32 v{vT1}, v{vT0}, v{vG}""")
        def wparams(unit, ab, dst, csd, scale, ones):
            a(f"""s_mul_i32 s24, s{unit}, 37
            s_lshr_b32 s24, s24, 9
            s_mul_i32 s25, s24, 14
            s_sub_u32 s25, s{unit}, s25
            s_mul_i32 s26, s25, {32*2688}
            s_mul_i32 s{dst}, s{sH}, 56
            s_add_u32 s26, s26, s{dst}
            s_add_u32 s{dst}, s24, 1
            s_cmp_eq_u32 s{dst}, 3
            s_cselect_b32 s{dst}, 0, s{dst}
            s_mul_i32 s{dst}, s{dst}, 896
            s_add_u32 s26, s26, s{dst}
            s_lshl_b32 s{csd}, s{ab}, 4
            s_add_u32 s{csd}, s{csd}, s{sH}
            s_mul_i32 s{csd}, s{csd}, 3
            s_add_u32 s{csd}, s{csd}, s24
            s_mul_i32 s{dst}, s{csd}, 28672
            s_lshl_b32 s{csd}, s{csd}, 4
            s_add_u32 s{csd}, s{csd}, s25
            s_lshl_b32 s{csd}, s{csd}, 7
            s_add_u32 s{csd}, s{csd}, {CS}
            s_lshl_b32 s25, s25, 11
            s_add_u32 s{dst}, s{dst}, s25
            s_add_u32 s{dst}, s{dst}, {WF_A}
            s_cmp_eq_u32 s{ab}, 0
            s_mov_b32 s{scale}, {f2u(1.0)}
            s_cmov_b32 s{scale}, {f2u(LOG2E)}
            s_mov_b32 s25, {f2u(LOG2E*DH**-0.5)}
            s_cmov_b32 s25, {f2u(LOG2E)}
            s_cmp_eq_u32 s24, 2
            s_cselect_b32 s{scale}, s25, s{scale}
            s_cmp_eq_u32 s24, 1
            s_cmov_b32 s{scale}, {f2u(1.0)}
            s_cmp_eq_u32 s24, 0
            s_cselect_b32 s{ones}, 28, 63""")
        assert WF_B == WF_A + 16 * WF_HEAD
        wparams(22, 23, 96, 97, 100, 101)
        stage(88, vT1, 26, 3, 0, "u1"); a(f"s_add_u32 s26, s26, {16*2688}"); stage(88, vT1, 26, 3, 1024, "u1")
        a(f"""s_lshl_b32 s25, s23, 1
        s_add_u32 s53, s25, s24
        s_mul_i32 s25, s{sH}, 1568
        s_add_u32 s92, s76, s25
        s_addc_u32 s93, s77, 0
        s_mov_b32 s94, 1568
        s_mov_b32 m0, s27
        s_mov_b32 s25, 0""")
        a(f"buffer_load_dwordx4 v{vL16}, s[92:95], s25 offen lds", tag="u1")
        a(f"buffer_load_dwordx4 v{vL16}, s[92:95], s25 offen offset:1024 lds", tag="u1")
        L2o, L2j = f"{n}_u2o", f"{n}_u2j"
        a(f"""s_mov_b32 s88, s80
        s_mov_b32 s89, s81
        s_mov_b32 s71, 28
        s_cmp_ge_u32 s15, 20
        s_cbranch_scc1 {L2o}
        s_add_u32 s22, s15, 22
        s_mov_b32 s23, 1""")
        wparams(22, 23, 98, 99, 61, 64)
        a(f"""s_mov_b32 s22, {16*2688}
        v_mov_b32 v{vT2}, v{vT1}
        s_branch {L2j}""")
        a.label(L2o); a.flush_hist()
        a(f"""s_sub_u32 s22, s15, 20
        s_cmp_ge_u32 s22, 14
        s_cselect_b32 s88, s82, s78
        s_cselect_b32 s89, s83, s79
        s_cselect_b32 s23, 14, 0
        s_mov_b32 s98, {WO_A}
        s_cmov_b32 s98, {WO_B}
        s_sub_u32 s22, s22, s23
        s_mov_b32 s90, {D*D*2}
        s_mul_i32 s26, s{sH}, {28*896}
        s_lshl_b32 s25, s22, 6
        s_add_u32 s26, s26, s25
        s_lshl_b32 s25, s22, 15
        s_add_u32 s98, s98, s25
        s_lshl_b32 s25, s{sH}, 11
        s_add_u32 s98, s98, s25
        s_mov_b32 s99, {WS_BYTES}
        s_mov_b32 s61, {f2u(1.0)}
        s_mov_b32 s64, 63
        s_mov_b32 s71, 32
        s_cmp_ge_u32 s15, 48
        s_cmov_b32 s98, {WS_BYTES}
        s_cmov_b32 s90, 0
        s_mov_b32 s22, {16*896}
        v_mov_b32 v{vT1}, v{vG}
        v_mov_b32 v{vT2}, 0x10000000
        v_cmp_gt_u32 vcc, 48, v0
        v_cndmask_b32 v{vT2}, v{vT2}, v{vG}, vcc""")
        a.label(L2j); a.flush_hist()
        stage(88, vT1, 26, 3, 2048, "u2"); a(f"s_add_u32 s26, s26, s22"); stage(88, vT2, 26, 3, 3072, "u2")
        self.early(vR)
        self.identity_b(TB + 8)
        self.x0_publish(vR, 21)
        self.stamp("x0 out")
        Lid, Lb = f"{n}_tid", f"{n}_tb"
        a(f"""v_bfe_u32 v{vT0}, v0, 2, 2
        v_lshl_add_u32 v{vT0}, v{vA0+1}, 3, v{vT0}
        v_mul_u32_u24 v{vT0}, 56, v{vT0}
        v_bfe_u32 v{vT1}, v0, 4, 1
        v_lshl_add_u32 v{vT0}, v{vT1}, 5, v{vT0}
        v_and_b32 v{vT1}, 3, v0
        v_lshl_add_u32 v{vT0}, v{vT1}, 3, v{vT0}
        v_add_u32 v{vT0}, s27, v{vT0}
        v_add_u32 v{vR+2}, s3, v{vR}
        v_add_u32 v{vR+3}, s3, v{vR+1}""")
        a.wait(vm="u1")
        for sub in range(2): a(f"ds_read_b128 {vr(TL+4*sub,4)}, v{vR+2+sub}")
        for sub in range(2):
            for rd in range(2):
                a(f"ds_read_b64_tr_b16 {vr(TB+4*sub+2*rd,2)}, v{vT0} offset:{(16*sub+4*rd)*56}")
        a(f"""s_waitcnt lgkmcnt(0)
        s_and_b32 s25, s53, 1
        s_cmp_lg_u32 s25, 0
        s_cbranch_scc1 {Lid}
        s_cmp_ge_u32 s15, 42
        s_cbranch_scc1 {Lid}""")
        a.label(Lb)
        def emit():
            for p in range(8): a(f"v_mov_b32 v{TB+p}, v{TB+8+p}")
            a(f"s_nop 1\ns_branch {Lb}")
        self.stub(Lid, emit)
        self.unit(TL, TD, TP, TB, 96, 97, 100, 101, "28", "u1st")
        self.stamp("u1 out")
        a.wait(vm="u2")
        for sub in range(2): a(f"ds_read_b128 {vr(TL+8+4*sub,4)}, v{vR+2+sub} offset:2048", tag="t2")
        a(f"""s_lshl_b32 s{sT0}, s{sH}, 4
        s_add_u32 s{sT0}, s{sT0}, s{sRB}
        s_lshl_b32 s{sT2}, s{sT0}, 2
        s_add_u32 s22, s{sT2}, {F_G2}
        s_lshl_b32 s{sT0}, s{sH}, 7
        s_lshl_b32 s{sT1}, s{sRB}, 2
        s_add_u32 s{sT0}, s{sT0}, s{sT1}
        s_add_u32 s{sT0}, s{sT0}, {F_G1H}
        s_lshl_b32 s{sT1}, s{sRB}, 7
        s_lshl_b32 s{sT2}, s{sH}, 2
        s_add_u32 s{sT1}, s{sT1}, s{sT2}
        s_add_u32 s{sT1}, s{sT1}, {F_G1R}
        v_mov_b32 v{vA0+3}, s{sT0}
        v_writelane_b32 v{vA0+3}, s{sT1}, 1""")
        a.wait(lg="t2")
        d2 = TD + 16
        a(f"v_mfma_f32_32x32x16_bf16 {vr(d2,16)}, {vr(TL+8,4)}, {vr(TB+8,4)}, 0")
        a(f"v_mfma_f32_32x32x16_bf16 {vr(d2,16)}, {vr(TL+12,4)}, {vr(TB+12,4)}, {vr(d2,16)}")
        Lnf = a.newlabel("nog1")
        a(f"""s_waitcnt vmcnt(0)
        s_barrier
        s_cmp_lg_u32 s{sW}, 0
        s_cbranch_scc1 {Lnf}
        s_mov_b64 exec, 3
        buffer_store_dword v{vFL}, v{vA0+3}, s[4:7], 0 offen sc1
        s_mov_b64 exec, -1""")
        a.label(Lnf)
        a.vm = []
        self.stamp("published")
        self.unit(TL + 8, d2, TP + 8, TB + 8, 98, 99, 61, 64, "s71", "u2st", mfma=False)
        a(f"""s_getreg_b32 s{sXCC}, hwreg(HW_REG_XCC_ID, 0, 4)
        s_add_u32 s{sXCC}, s{sXCC}, s{sTAG}
        s_add_u32 s{sXCC}, s{sXCC}, 1
        s_lshl_b32 s{sT0}, s{sRB}, 7
        s_lshl_b32 s{sT1}, s{sH}, 2
        s_add_u32 s{sT0}, s{sT0}, s{sT1}
        s_add_u32 s23, s{sT0}, {F_XCC}""")
        self.addr_A()
        a(f"""s_lshl_b32 s{sT0}, s{sH}, 7
        s_add_u32 s{sT0}, s{sT0}, {F_G1H}
        s_lshl_b32 s{sT1}, s{sRB}, 7
        s_add_u32 s{sT1}, s{sT1}, {F_G1R}
        v_mov_b32 v{vT0}, s{sT0}
        v_mov_b32 v{vT1}, s{sT1}
        v_cndmask_b32 v{vT0}, v{vT0}, v{vT1}, s[{sUP}:{sUP+1}]
        v_and_b32 v{vT1}, 15, v0
        v_lshl_add_u32 v{vT0}, v{vT1}, 2, v{vT0}
        s_waitcnt vmcnt(0)
        s_barrier""")
        Lw = a.newlabel("g1wait")
        a(f"""s_cmp_lg_u32 s{sW}, 0
        s_cbranch_scc1 {Lw}
        v_mov_b32 v{vA0+3}, s22
        v_writelane_b32 v{vA0+3}, s23, 1
        v_writelane_b32 v{vFL}, s{sXCC}, 1
        s_mov_b64 exec, 3
        buffer_store_dword v{vFL}, v{vA0+3}, s[4:7], 0 offen sc1
        s_mov_b64 exec, -1""")
        self.poll(vT0, None, 0, int(os.environ.get('SLP', 2)))
        a.label(Lw)
        a("s_barrier")
        self.stamp("G1 poll")
        assert XPRE == 8
        self.cs_loads(0)
        for i in range(2):
            self.wdma(sWA, i, i + 1, tag=("wc", i)); self.wdma(sWA, 7 + i, 8 + i, tag=("wc", i))
            self.x_loads(4 * i, 4 * i + 4)

    def unit(self, TL, d, TP, TB, dst, csd, scale, ones, lim, tag, mfma=True):
        a = self.a
        if mfma:
            a(f"v_mfma_f32_32x32x16_bf16 {vr(d,16)}, {vr(TL,4)}, {vr(TB,4)}, 0")
            a(f"v_mfma_f32_32x32x16_bf16 {vr(d,16)}, {vr(TL+4,4)}, {vr(TB+4,4)}, {vr(d,16)}")
        a(f"""v_mov_b32 v{vC}, s{scale}
        v_cmp_gt_u32 vcc, {lim}, v{vA0}
        v_cndmask_b32 v{vC}, 0, v{vC}, vcc
        v_cmp_eq_u32 vcc, s{ones}, v{vA0}
        v_cndmask_b32 v{vC+1}, 0, 1.0, vcc
        v_lshlrev_b32 v{vT2}, 2, v{vA0}""")
        for p in range(8):
            a(f"v_pk_fma_f32 {vr(d+2*p,2)}, {vr(d+2*p,2)}, {vr(vC,2)}, {vr(vC,2)} op_sel:[0,0,1] op_sel_hi:[1,0,1]")
        self.pack16(TP, d)
        a(f"buffer_store_dwordx4 {vr(TP,4)}, v{vL16}, s[4:7], s{dst} offen sc1", tag=tag)
        a(f"buffer_store_dwordx4 {vr(TP+4,4)}, v{vL16}, s[4:7], s{dst} offen offset:1024 sc1", tag=tag)
        for st in (8, 4, 2):
            for p in range(0, st, 2):
                a(f"v_pk_add_f32 {vr(d+p,2)}, {vr(d+p,2)}, {vr(d+p+st,2)}")
        a(f"""v_add_f32 v{vT0}, v{d}, v{d+1}
        v_mov_b32 v{vT1}, v{vT0}
        v_permlane32_swap_b32 v{vT0}, v{vT1}
        v_add_f32 v{vT0}, v{vT0}, v{vT1}""")
        a(f"buffer_store_dword v{vT0}, v{vT2}, s[4:7], s{csd} offen sc1", tag=tag)

    def g2_load(self):
        a = self.a
        a(f"""s_mov_b32 s{sBG}, {F_G2}
        v_and_b32 v{CSR+5}, 15, v0
        v_lshlrev_b32 v{CSR+5}, 2, v{CSR+5}
        s_lshl_b32 s{sBG1}, s{sRB}, 7
        s_add_u32 s{sBG1}, s{sBG1}, {F_XCC}""")
        a(f"buffer_load_dwordx4 {vr(CSR,4)}, v{vL16}, s[4:7], s{sBG} offen sc1", tag="g2")
        a(f"buffer_load_dword v{CSR+4}, v{CSR+5}, s[4:7], s{sBG1} offen sc1", tag="g2")
    def g2_check(self):
        a = self.a
        L = a.newlabel("g2"); Lr = a.newlabel("g2again")
        a.wait(vm="g2")
        a.label(L)
        a(f"""v_xor_b32 v{CSR}, s{sTAG}, v{CSR}
        v_xor_b32 v{CSR+1}, s{sTAG}, v{CSR+1}
        v_xor_b32 v{CSR+2}, s{sTAG}, v{CSR+2}
        v_xor_b32 v{CSR+3}, s{sTAG}, v{CSR+3}
        v_subrev_u32 v{CSR+6}, s{sTAG}, v{CSR+4}
        v_subrev_u32 v{CSR+6}, 1, v{CSR+6}
        v_lshrrev_b32 v{CSR+6}, 4, v{CSR+6}
        v_or3_b32 v{CSR}, v{CSR}, v{CSR+1}, v{CSR+2}
        v_or3_b32 v{CSR}, v{CSR}, v{CSR+3}, v{CSR+6}
        v_cmp_ne_u32 vcc, 0, v{CSR}
        s_cbranch_vccnz {Lr}
        v_cmp_ne_u32 vcc, s{sXCC}, v{CSR+4}
        s_cmp_eq_u64 vcc, 0
        s_cselect_b32 s{sFAST}, 1, 0""")
        def emit():
            a(f"""s_sleep 2
            s_sub_u32 s{sTO}, s{sTO}, 1
            s_cmp_eq_u32 s{sTO}, 0
            s_cbranch_scc1 {self.name}_end""")
            self.g2_load()
            a(f"s_waitcnt vmcnt(0)\ns_branch {L}")
        self.stub(Lr, emit)
    def cs_loads(self, ab):
        a = self.a
        a(f"""s_add_u32 s{sT0}, s{sH}, {16*ab}
        s_mul_i32 s{sT0}, s{sT0}, 3
        s_min_u32 s{sT1}, s{sW}, 2
        s_add_u32 s{sT0}, s{sT0}, s{sT1}
        s_lshl_b32 s{sT0}, s{sT0}, 11
        s_add_u32 s{sT0}, s{sT0}, {CS}
        v_lshrrev_b32 v{vT0}, 5, v0
        v_mul_u32_u24 v{vT0}, {7*128}, v{vT0}
        v_and_b32 v{vT1}, 31, v0
        v_lshl_add_u32 v{vT0}, v{vT1}, 2, v{vT0}""")
        for i in range(7):
            a(f"buffer_load_dword v{CSR+i}, v{vT0}, s[4:7], s{sT0} offen offset:{128*i} sc1", tag="cs")
    def cs_store(self, ab):
        a = self.a
        a.wait(vm="cs")
        a(f"""v_add_f32 v{vT0}, v{CSR}, v{CSR+1}
        v_add_f32 v{vT1}, v{CSR+2}, v{CSR+3}
        v_add_f32 v{vT0}, v{vT0}, v{CSR+4}
        v_add_f32 v{vT1}, v{vT1}, v{CSR+5}
        v_add_f32 v{vT0}, v{vT0}, v{CSR+6}
        v_add_f32 v{vT0}, v{vT0}, v{vT1}
        v_mov_b32 v{vT1}, v{vT0}
        s_min_u32 s{sT1}, s{sW}, 2
        s_lshl_b32 s{sT1}, s{sT1}, 7
        s_add_u32 s{sT1}, s{sT1}, {L_CS + 384*ab}
        v_and_b32 v{vT2}, 31, v0
        v_permlane32_swap_b32 v{vT0}, v{vT1}
        v_add_f32 v{vT0}, v{vT0}, v{vT1}
        v_mul_f32 v{vT0}, {f2u(-1.0/D)}, v{vT0}
        v_lshl_add_u32 v{vT2}, v{vT2}, 2, s{sT1}""")
        a(f"ds_write_b32 v{vT2}, v{vT0}", tag="csw")
    def cs_read(self, ab, mat, dst):
        a = self.a
        def rd(j):
            if j == 0: a(f"v_lshrrev_b32 v{vA0+1}, 5, v0\nv_lshlrev_b32 v{vA0+1}, 4, v{vA0+1}\nv_add_u32 v{vA0+1}, {L_CS}, v{vA0+1}")
            a(f"ds_read_b128 {vr(dst+4*j,4)}, v{vA0+1} offset:{384*ab+128*mat+32*j}", tag=("csr", mat))
        return [(lambda j=j: rd(j)) for j in range(4)]
    def center(self, acc, cs, mat):
        a = self.a
        a.wait(lg=("csr", mat))
        for p in range(8):
            a(f"v_pk_fma_f32 {vr(acc+2*p,2)}, {vr(cs+2*p,2)}, {vr(vSX,2)}, {vr(acc+2*p,2)} op_sel_hi:[1,0,1]")

    def early(self, vR):
        a = self.a; n = self.name
        a(f"""v_bfe_u32 v{vT0}, v0, 2, 2
        v_xor_b32 v{vT0}, v{vT0}, v{vA0+1}
        v_lshlrev_b32 v{vT0}, 4, v{vT0}
        v_lshl_add_u32 v{vR}, v{vA0}, 6, v{vT0}
        v_xor_b32 v{vR+1}, 32, v{vR}""")
        if "notlb" not in OPT:
            a(f"""v_min_u32 v{vT2}, 8, v0
            v_lshlrev_b32 v{vT2}, 21, v{vT2}
            v_add_u32 v{vT2}, 0x1f0000, v{vT2}
            buffer_load_dword v{vDUM}, v{vT2}, s[4:7], 0 offen""")
        a(f"""s_lshl_b32 s{sT0}, s{sH}, 16
        s_lshl_b32 s{sT1}, s{sRB}, 12
        s_add_u32 s{sKVPW}, s{sT0}, s{sT1}
        s_add_u32 s{sKVPW}, s{sKVPW}, {KVP}
        s_add_u32 s{sKVPR}, s{sKVPW}, s{sM0W}
        s_lshl_b32 s{sT0}, s{sH}, 18
        s_lshl_b32 s{sT1}, s{sRB}, 14
        s_add_u32 s{sKVO}, s{sT0}, s{sT1}
        s_lshl_b32 s{sT1}, s{sW}, 12
        s_add_u32 s{sKVO}, s{sKVO}, s{sT1}
        s_add_u32 s{sKVO}, s{sKVO}, {KV}
        s_lshl_b32 s{sT0}, s{sH}, 1
        s_lshr_b32 s{sT1}, s{sW}, 1
        s_add_u32 s{sT0}, s{sT0}, s{sT1}
        s_lshl_b32 s{sT0}, s{sT0}, 7
        s_add_u32 s{sFKVPR}, s{sT0}, {F_KVP}
        s_lshl_b32 s{sT0}, s{sRB}, 1
        s_and_b32 s{sT1}, s{sW}, 1
        s_add_u32 s{sT0}, s{sT0}, s{sT1}
        s_lshl_b32 s{sT0}, s{sT0}, 2
        s_add_u32 s{sFKVPW}, s{sFKVPR}, s{sT0}
        s_lshl_b32 s{sT0}, s{sH}, 2
        s_add_u32 s{sT0}, s{sT0}, s{sW}
        s_lshl_b32 s{sT0}, s{sT0}, 7
        s_add_u32 s{sFKVR}, s{sT0}, {F_KV}
        s_lshl_b32 s{sT0}, s{sRB}, 2
        s_add_u32 s{sFKVW}, s{sFKVR}, s{sT0}
        s_waitcnt lgkmcnt(0)
        s_mul_i32 s{sTAG}, s{sTAG}, 0x9E3779C1
        s_add_u32 s{sTAG}, s{sTAG}, 0x7F4A7C20""")

    def x0_publish(self, vR, sl):
        a = self.a
        L = a.newlabel("x0skip")
        a(f"v_add_u32 v{vT0}, s{sl}, v{vR}\nv_add_u32 v{vT1}, s{sl}, v{vR+1}")
        a.wait(vm="x0")
        a(f"""ds_read_b128 {vr(EP,4)}, v{vT0}
        ds_read_b128 {vr(EP+4,4)}, v{vT1}
        s_waitcnt lgkmcnt(0)
        v_permlane32_swap_b32 v{EP}, v{EP+2}
        v_permlane32_swap_b32 v{EP+1}, v{EP+3}
        v_permlane32_swap_b32 v{EP+4}, v{EP+6}
        v_permlane32_swap_b32 v{EP+5}, v{EP+7}""")
        for p in range(8):
            a(f"v_lshlrev_b32 v{XRES+2*p}, 16, v{EP+p}\nv_and_b32 v{XRES+2*p+1}, 0xffff0000, v{EP+p}")
        a(f"s_cmp_eq_u32 s{sACT}, 1\ns_cselect_b32 s6, {WS_BYTES}, 0")
        self.publish_x(0, direct=True)
        a(f"s_mov_b32 s6, {WS_BYTES}")
    def addr_A(self):
        a = self.a
        a(f"""v_and_b32 v{vT0}, 31, v0
        v_lshrrev_b32 v{vT1}, 5, v0
        s_lshl_b32 s{sT0}, s{sW}, 5
        v_add_u32 v{vT2}, s{sT0}, v{vT0}
        v_and_b32 v{vT3}, 9, v0
        v_bfe_u32 v{vA0}, v0, 1, 1
        v_lshl_or_b32 v{vT3}, v{vA0}, 2, v{vT3}
        v_bfe_u32 v{vA0}, v0, 2, 1
        v_lshl_or_b32 v{vT3}, v{vA0}, 1, v{vT3}
        v_xor_b32 v{vT3}, v{vT3}, v{vT1}
        v_lshlrev_b32 v{vT3}, 3, v{vT3}
        v_lshl_add_u32 v{vT3}, v{vT2}, 7, v{vT3}
        v_add_u32 v{ADR}, {L_PHI}, v{vT3}
        v_bfe_u32 v{vT3}, v0, 1, 3
        v_xor_b32 v{vT3}, v{vT3}, v{vT1}
        v_lshlrev_b32 v{vT3}, 3, v{vT3}
        v_lshl_add_u32 v{vT3}, v{vT2}, 6, v{vT3}
        v_add_u32 v{ADR+1}, {L_VV}, v{vT3}""")
        a(f"""v_bfe_u32 v{vT0}, v0, 2, 2
        v_lshrrev_b32 v{vT1}, 4, v0
        v_lshl_add_u32 v{vT2}, v{vT1}, 3, v{vT0}
        v_bfe_u32 v{vT3}, v0, 4, 1
        v_lshlrev_b32 v{vT3}, 3, v{vT3}
        v_bfe_u32 v{vA0}, v0, 3, 1
        v_lshl_or_b32 v{vT3}, v{vA0}, 2, v{vT3}
        v_bfe_u32 v{vA0}, v0, 2, 1
        v_or_b32 v{vT3}, v{vT3}, v{vA0}
        v_and_b32 v{vA0}, 3, v0
        s_lshr_b32 s{sT0}, s{sW}, 1
        s_lshl_b32 s{sT0}, s{sT0}, 3
        v_or_b32 v{vA0}, s{sT0}, v{vA0}
        v_xor_b32 v{vT3}, v{vT3}, v{vA0}
        v_lshlrev_b32 v{vT3}, 3, v{vT3}
        v_lshl_add_u32 v{vT3}, v{vT2}, 7, v{vT3}
        v_add_u32 v{ADR+2}, {L_PHI}, v{vT3}
        v_xor_b32 v{ADR+3}, 16, v{ADR+2}
        v_add_u32 v{ADR+3}, 512, v{ADR+3}
        v_xor_b32 v{ADR+4}, 32, v{ADR+2}
        v_xor_b32 v{ADR+5}, 32, v{ADR+3}
        v_bfe_u32 v{vT3}, v0, 4, 1
        v_lshlrev_b32 v{vT3}, 2, v{vT3}
        v_bfe_u32 v{vA0}, v0, 3, 1
        v_or_b32 v{vT3}, v{vT3}, v{vA0}
        v_and_b32 v{vA0}, 3, v0
        s_and_b32 s{sT0}, s{sW}, 1
        s_lshl_b32 s{sT0}, s{sT0}, 2
        v_or_b32 v{vA0}, s{sT0}, v{vA0}
        v_xor_b32 v{vT3}, v{vT3}, v{vA0}
        v_lshlrev_b32 v{vT3}, 3, v{vT3}
        v_lshl_add_u32 v{vT3}, v{vT2}, 6, v{vT3}
        v_add_u32 v{ADR+6}, {L_VV}, v{vT3}
        v_xor_b32 v{ADR+7}, 16, v{ADR+6}
        v_add_u32 v{ADR+7}, 256, v{ADR+7}""")

    def addr_B(self):
        a = self.a
        a(f"""v_and_b32 v{vT0}, 31, v0
        v_lshrrev_b32 v{vT1}, 5, v0
        s_lshl_b32 s{sT0}, s{sW}, 11
        s_add_u32 s{sT0}, s{sT0}, {L_VT}
        v_bfe_u32 v{vT3}, v0, 1, 3
        v_xor_b32 v{vT3}, v{vT3}, v{vT1}
        v_lshlrev_b32 v{vT3}, 3, v{vT3}
        v_lshl_add_u32 v{vT3}, v{vT0}, 6, v{vT3}
        v_add_u32 v{ADR}, s{sT0}, v{vT3}
        v_bfe_u32 v{vT0}, v0, 2, 2
        v_lshl_add_u32 v{vT2}, v{vT1}, 3, v{vT0}
        v_bfe_u32 v{vT3}, v0, 3, 1
        v_lshl_or_b32 v{vT3}, v{vT1}, 2, v{vT3}
        v_and_b32 v{vA0}, 3, v0
        v_bfe_u32 v{vT0}, v0, 4, 1
        v_lshl_or_b32 v{vA0}, v{vT0}, 2, v{vA0}
        v_xor_b32 v{vT3}, v{vT3}, v{vA0}
        v_lshlrev_b32 v{vT3}, 3, v{vT3}
        v_lshl_add_u32 v{vT3}, v{vT2}, 6, v{vT3}
        v_add_u32 v{ADR+1}, s{sT0}, v{vT3}
        v_xor_b32 v{ADR+2}, 16, v{ADR+1}
        v_add_u32 v{ADR+2}, 256, v{ADR+2}""")

    def gemm_kv(self, ab, bg=None, first=False):
        a = self.a
        bg = self.ss_loads() + list(bg or [])
        lbg = self.cs_read(ab, 0, EP) + self.cs_read(ab, 1, EM)
        per = -(-len(bg) // XPRE)
        def chunk(ks):
            if first and ks % 4 == 0 and ks < 28:
                if ks == 4: self.cs_store(0); a.wait(lg="csw")
                a.wait(vm=("wc", ks // 4)); a("s_barrier")
        chunk(0)
        def rd(ks):
            s = RING + 8 * (ks % 3)
            return (f"ds_read_b128 {vr(s,4)}, v{vL16} offset:{L_W+1024*ks}", f"ds_read_b128 {vr(s+4,4)}, v{vL16} offset:{L_W+28672+1024*ks}")
        for ks in range(2):
            for l in rd(ks): a(l, tag=("w", ks))
        for ks in range(28):
            s = RING + 8 * (ks % 3); x = X + 4 * ks
            a.wait(vm=("x", ks), lg=("w", ks))
            ck = vr(ACCK, 16) if ks else "0"; cv = vr(ACCV, 16) if ks else "0"
            a(f"v_mfma_f32_32x32x16_bf16 {vr(ACCK,16)}, {vr(s,4)}, {vr(x,4)}, {ck}")
            if first and ks + 8 < 28 and ks % 4 < 2:
                i = (ks + 8) // 4
                self.wdma(sWA, i + 7 * (ks % 4), i + 7 * (ks % 4) + 1, tag=("wc", i))
            if ks + XPRE < 28: self.x_loads(ks + XPRE, ks + XPRE + 1)
            elif bg: bg.pop(0)()
            chunk(ks + 2)
            if ks + 2 < 28: a(rd(ks + 2)[0], tag=("w", ks + 2))
            a(f"v_mfma_f32_32x32x16_bf16 {vr(ACCV,16)}, {vr(s+4,4)}, {vr(x,4)}, {cv}")
            if ks + 2 < 28: a(rd(ks + 2)[1], tag=("w", ks + 2))
            if ks + XPRE >= 28:
                for t in range(per - 1):
                    if bg: bg.pop(0)()
            if ks >= 18 and lbg: lbg.pop(0)()
        assert not bg and not lbg
    def gemm_q(self, ab, acc, hook=None, hook_at=22, fill=None):
        a = self.a
        lbg = self.cs_read(ab, 2, EP)
        base = L_W + 57344 - 32768
        a(f"v_add_u32 v{vA0}, 32768, v{vL16}")
        def rd(ks): return f"ds_read_b128 {vr(RING+4*(ks%4),4)}, v{vA0} offset:{base+1024*ks}"
        for ks in range(3): a(rd(ks), tag=("wq", ks))
        for ks in range(28):
            a.wait(lg=("wq", ks))
            c = vr(acc, 16) if ks else "0"
            a(f"v_mfma_f32_32x32x16_bf16 {vr(acc,16)}, {vr(RING+4*(ks%4),4)}, {vr(X+4*ks,4)}, {c}")
            if ks + 3 < 28: a(rd(ks + 3), tag=("wq", ks + 3))
            if fill: fill(ks)
            if ks >= 16 and lbg: lbg.pop(0)()
            if hook and ks == hook_at: hook()
    def stats(self):
        a = self.a
        a.wait(vm="ss")
        a(f"""v_add_f32 v{vT0}, v{ACCS}, v{ACCS+1}
        v_add_f32 v{vT1}, v{ACCS+2}, v{ACCS+3}
        v_add_f32 v{vT0}, v{vT0}, v{ACCS+4}
        v_add_f32 v{vT1}, v{vT1}, v{ACCS+5}
        v_add_f32 v{vT0}, v{vT0}, v{ACCS+6}
        v_add_f32 v{vT0}, v{vT0}, v{vT1}
        v_mov_b32 v{vT1}, v{vT0}
        v_mov_b32 v{vT2}, v{ACCK+12}
        v_mov_b32 v{vSX}, v{ACCK+12}
        v_permlane32_swap_b32 v{vT0}, v{vT1}
        v_permlane32_swap_b32 v{vT2}, v{vSX}
        v_add_f32 v{vT0}, v{vT0}, v{vT1}
        v_mul_f32 v{vT3}, {f2u(1.0/D)}, v{vSX}
        v_mul_f32 v{vT0}, {f2u(1.0/D)}, v{vT0}
        v_fma_f32 v{vT0}, -v{vT3}, v{vT3}, v{vT0}
        v_max_f32 v{vT0}, 0, v{vT0}
        v_add_f32 v{vT0}, {f2u(1e-5)}, v{vT0}
        v_rsq_f32 v{vRS}, v{vT0}""")
        self.center(ACCV, EM, 1)
        self.center(ACCK, EP, 0)
    def scale16(self, acc, sreg):
        for p in range(8):
            self.a(f"v_pk_mul_f32 {vr(acc+2*p,2)}, {vr(acc+2*p,2)}, {vr(sreg,2)} op_sel_hi:[1,0]")
    def pack16(self, dst, src):
        for p in range(8): self.a(f"v_cvt_pk_bf16_f32 v{dst+p}, v{src+2*p}, v{src+2*p+1}")
    def tree3(self, op, dst, regs):
        a = self.a
        a(f"{op} v{dst}, v{regs[0]}, v{regs[1]}, v{regs[2]}")
        i = 3
        while i + 1 < len(regs):
            a(f"{op} v{dst}, v{dst}, v{regs[i]}, v{regs[i+1]}"); i += 2
        if i < len(regs): a(f"{op} v{dst}, v{dst}, v{regs[i]}, v{regs[i]}")
    def feature_map(self, acc, outp, outm):
        a = self.a
        self.upper()
        for r in range(12, 16): a(f"v_mov_b32 v{acc+r}, v{acc}")
        self.full()
        regs = list(range(acc, acc + 16))
        self.tree3("v_max3_f32", vT0, regs)
        self.tree3("v_min3_f32", vT2, regs)
        a(f"""v_mov_b32 v{vT1}, v{vT0}
        v_mov_b32 v{vT3}, v{vT2}
        v_permlane32_swap_b32 v{vT0}, v{vT1}
        v_permlane32_swap_b32 v{vT2}, v{vT3}
        v_max_f32 v{vT0}, v{vT0}, v{vT1}
        v_min_f32 v{vT2}, v{vT2}, v{vT3}
        v_mul_f32 v{vC}, -v{vT0}, v{vRS}
        v_mul_f32 v{vC+1}, v{vT2}, v{vRS}""")
        for p in range(8):
            a(f"v_pk_fma_f32 {vr(EP+2*p,2)}, {vr(acc+2*p,2)}, {vr(vRS,2)}, {vr(vC,2)} op_sel_hi:[1,0,0]")
            a(f"v_pk_fma_f32 {vr(EM+2*p,2)}, {vr(acc+2*p,2)}, {vr(vRS,2)}, {vr(vC,2)} op_sel:[0,0,1] op_sel_hi:[1,0,1] neg_lo:[1,0,0] neg_hi:[1,0,0]")
        for r in range(16):
            a(f"v_exp_f32 v{EP+r}, v{EP+r}")
            a(f"v_exp_f32 v{EM+r}, v{EM+r}")
        self.upper()
        for r in range(12, 16): a(f"v_mov_b32 v{EP+r}, 0\nv_mov_b32 v{EM+r}, 0")
        self.full()
        a(f"v_pk_add_f32 {vr(vT0,2)}, {vr(EP,2)}, {vr(EP+2,2)}")
        a(f"v_pk_add_f32 {vr(vT2,2)}, {vr(EM,2)}, {vr(EM+2,2)}")
        for p in range(2, 8):
            a(f"v_pk_add_f32 {vr(vT0,2)}, {vr(vT0,2)}, {vr(EP+2*p,2)}")
            a(f"v_pk_add_f32 {vr(vT2,2)}, {vr(vT2,2)}, {vr(EM+2*p,2)}")
        a(f"""v_add_f32 v{vT0}, v{vT0}, v{vT1}
        v_add_f32 v{vT2}, v{vT2}, v{vT3}
        v_mov_b32 v{vT1}, v{vT0}
        v_mov_b32 v{vT3}, v{vT2}
        v_permlane32_swap_b32 v{vT0}, v{vT1}
        v_permlane32_swap_b32 v{vT2}, v{vT3}
        v_add_f32 v{vT0}, v{vT0}, v{vT1}
        v_add_f32 v{vT2}, v{vT2}, v{vT3}
        v_rcp_f32 v{vC}, v{vT0}
        v_rcp_f32 v{vC+1}, v{vT2}""")
        for p in range(8):
            a(f"v_pk_mul_f32 {vr(EP+2*p,2)}, {vr(EP+2*p,2)}, {vr(vC,2)} op_sel_hi:[1,0]")
            a(f"v_pk_mul_f32 {vr(EM+2*p,2)}, {vr(EM+2*p,2)}, {vr(vC,2)} op_sel:[0,1] op_sel_hi:[1,1]")
        self.pack16(outp, EP)
        self.pack16(outm, EM)
    def bcast_up_rcp(self, src, add=None):
        a = self.a
        a(f"""v_mov_b32 v{vT0}, v{src}
        v_mov_b32 v{vT1}, v{src}
        v_permlane32_swap_b32 v{vT0}, v{vT1}""")
        if add is not None: a(f"v_add_f32 v{vT1}, {f2u(add)}, v{vT1}")
        a(f"v_rcp_f32 v{vC}, v{vT1}")
    def publish_o(self, acc, layer):
        a = self.a
        self.scale16(acc, vC)
        self.pack16(EP, acc)
        self.dual([f"buffer_store_dwordx4 {vr(EP,4)}, v{vL16}, s[4:7], s{sOWR} offen",
                   f"buffer_store_dwordx4 {vr(EP+4,4)}, v{vL16}, s[4:7], s{sOWR} offen offset:1024"], tag="ost")
        self.flag_prep(layer)

    def layer_A(self, it):
        a = self.a; layer = 2 * it + 1
        if it:
            a(f"""s_add_u32 s{sKVPW}, s{sKVPW}, 0x100000
            s_add_u32 s{sKVPR}, s{sKVPR}, 0x100000
            s_add_u32 s{sFKVPW}, s{sFKVPW}, 4096
            s_add_u32 s{sFKVPR}, s{sFKVPR}, 4096""")
        lateq = it == 0 or bool(self.wa_left)
        bg = [(lambda i=i: self.wdma(sWA, i, i + 1, tag="wq")) for i in range(14, 21)] if lateq else []
        if it == 0: bg = [self.g2_load] + bg
        self.gemm_kv(0, bg, it == 0)
        self.stamp("A gemm kv")
        self.stats()
        if it == 0:
            self.g2_check()
            self.cs_loads(1)
            a.background([(lambda k=k: self.wo_load(sWOA, 0, k, k + 1)) for k in range(12)], 12)
        self.scale16(ACCV, vRS)
        self.upper(); a(f"v_mov_b32 v{ACCV+12}, 1.0"); self.full()
        self.pack16(RING, ACCV)
        for j in range(4):
            if j: a(f"v_xor_b32 v{vA0}, {16*j}, v{ADR+1}")
            a(f"ds_write_b64 v{vA0 if j else ADR+1}, {vr(RING+2*j,2)}", tag="stage")
        self.feature_map(ACCK, RING, RING + 8)
        for sgn in range(2):
            for j in range(4):
                c = 64 * sgn + 16 * j
                if c: a(f"v_xor_b32 v{vA0+(j&1)}, {c}, v{ADR}")
                a(f"ds_write_b64 v{vA0+(j&1) if c else ADR}, {vr(RING+8*sgn+2*j,2)}", tag="stage")
        a.bg_flush()
        if it == 0: self.cs_store(1); a.wait(lg="csw")
        a.wait(lg="stage")
        a.wait(vm="wq")
        a("s_barrier")
        self.stamp("A phi_k")
        def rds(k):
            b = EP + 12 * (k % 2)
            for t in range(2):
                for r in range(2):
                    a(f"ds_read_b64_tr_b16 {vr(b+4*t+2*r,2)}, v{ADR+2+2*t+r} offset:{4096*k}", tag=("kv", k))
            for r in range(2):
                a(f"ds_read_b64_tr_b16 {vr(b+8+2*r,2)}, v{ADR+6+r} offset:{2048*k}", tag=("kv", k))
        rds(0); rds(1)
        for k in range(4):
            b = EP + 12 * (k % 2)
            a.wait(lg=("kv", k))
            for t in range(2):
                c = vr(ACCS + 4 * t, 4) if k else "0"
                a(f"v_mfma_f32_16x16x32_bf16 {vr(ACCS+4*t,4)}, {vr(b+4*t,4)}, {vr(b+8,4)}, {c}")
            if k + 2 < 4: rds(k + 2)
        a(f"""v_lshrrev_b32 v{vT0}, 5, v0
        v_bfe_u32 v{vT1}, v0, 4, 1
        v_and_b32 v{vT2}, 15, v0
        v_lshl_or_b32 v{vT2}, v{vT1}, 5, v{vT2}
        v_lshlrev_b32 v{vT2}, 4, v{vT2}
        v_lshl_or_b32 v{vT2}, v{vT0}, 10, v{vT2}
        s_lshr_b32 s{sT0}, s{sW}, 1
        s_lshl_b32 s{sT0}, s{sT0}, 11
        s_and_b32 s{sT1}, s{sW}, 1
        s_lshl_b32 s{sT1}, s{sT1}, 8
        s_add_u32 s{sT0}, s{sT0}, s{sT1}
        s_add_u32 s{sT0}, s{sT0}, s{sKVPW}""")
        self.flag_prep(0)
        for p in range(4): a(f"v_cvt_pk_bf16_f32 v{EM+8+p}, v{ACCS+2*p}, v{ACCS+2*p+1}")
        a(f"v_permlane32_swap_b32 v{EM+8}, v{EM+10}\nv_permlane32_swap_b32 v{EM+9}, v{EM+11}")
        a(f"buffer_store_dwordx4 {vr(EM+8,4)}, v{vT2}, s[4:7], s{sT0} offen sc1", tag="kvp")
        self.stamp("A kv stored")
        def hook():
            a.wait(vm="kvp")
            self.flag(sFKVPW, False)
        def fill(ks):
            if it == 0 and ks < 20: self.wo_load(sWOA, 0, 12 + ks, 13 + ks)
        self.gemm_q(0, ACCK, hook, 22, fill)
        a.wait(lg=("csr", 2))
        a("s_barrier")
        self.stamp("A q gemm+flag")
        self.center(ACCK, EP, 2)
        if "notouch" not in OPT: self.touch_ox(RING)
        a.background([(lambda i=i: self.wdma(sWB, i, i + 1)) for i in range(8)], 10)
        self.feature_map(ACCK, PHQ, PHQ + 8)
        a.bg_flush()
        self.stamp("A phi_q")
        a(f"""v_and_b32 v{vT0}, 31, v0
        v_lshlrev_b32 v{vT0}, 2, v{vT0}""")
        self.poll(vT0, sFKVPR, 0)
        self.stamp("A kv poll")
        for r in range(16):
            a(f"s_xor_b32 s{sT1}, s{sKVPR}, {4096*r}")
            a(f"buffer_load_dwordx4 {vr(X+4*r,4)}, v{vL16}, s[4:7], s{sT1} offen sc1", tag=("p", r))
        a.background([(lambda i=i: self.wdma(sWB, i, i + 1)) for i in range(8, 14)], 24)
        for r in range(16):
            a.wait(vm=("p", r))
            for p in range(4):
                dst = (ACCV + 2 * p) if r == 0 else (ACCV + 8 + 2 * (p & 1))
                a(f"v_lshlrev_b32 v{dst}, 16, v{X+4*r+p}\nv_and_b32 v{dst+1}, 0xffff0000, v{X+4*r+p}")
                if r: a(f"v_pk_add_f32 {vr(ACCV+2*p,2)}, {vr(ACCV+2*p,2)}, {vr(dst,2)}")
        a.bg_flush()
        for p in range(4): a(f"v_cvt_pk_bf16_f32 v{EP+p}, v{ACCV+2*p}, v{ACCV+2*p+1}")
        a(f"""s_add_u32 s{sT0}, s{sM0W}, {L_KVS}
        v_add_u32 v{vA0}, s{sT0}, v{vL16}
        v_add_u32 v{vA0+1}, {L_KVS}, v{vL16}
        ds_write_b128 v{vA0}, {vr(EP,4)}
        s_waitcnt lgkmcnt(0)
        s_barrier""")
        self.stamp("A kv reduced")
        for k in range(4): a(f"ds_read_b128 {vr(EM+4*k,4)}, v{vA0+1} offset:{1024*k}", tag=("kvs", k))
        for k in range(4):
            a.wait(lg=("kvs", k))
            c = vr(ACCK, 16) if k else "0"
            a(f"v_mfma_f32_32x32x16_bf16 {vr(ACCK,16)}, {vr(EM+4*k,4)}, {vr(PHQ+4*k,4)}, {c}")
        self.bcast_up_rcp(ACCK + 12, 1e-6)
        self.publish_o(ACCK, layer)
        a.wait(vm="ost")
        self.flag(sFOW, True)
        self.stamp("A o flag")
        self.wo_phase(layer, 0, [(lambda i=i: self.wdma(sWB, i, i + 1)) for i in range(14, 21)], self.addr_B)

    def wo_phase(self, layer, abase, background=(), after=None):
        a = self.a
        a(f"v_and_b32 v{vT0}, 3, v0\nv_lshlrev_b32 v{vT0}, 2, v{vT0}")
        a(f"s_lshl_b32 s{sT2}, s{sW}, 13\ns_add_u32 s{sT2}, s{sT2}, {L_OST}")
        a(f"v_add_u32 v{vA0}, {L_OST}, v{vL16}")
        self.poll(vT0, sFOR, layer)
        self.stamp("o poll")
        for i in range(8):
            if i % 4 == 0:
                a(f"s_add_u32 m0, s{sT2}, {1024*i}\ns_add_u32 s{sT1}, s{sORD}, {1024*i}")
            a(f"buffer_load_dwordx4 v{vL16}, s[4:7], s{sT1} offen offset:{1024*(i%4)} sc1 lds", tag="odma")
        a.wait(vm="odma")
        a("s_barrier")
        self.stamp("o landed")
        Lskip = a.newlabel("woskip"); Ljoin = a.newlabel("wojoin")
        a(f"s_cmp_eq_u32 s{sACT}, 0\ns_cbranch_scc1 {Lskip}")
        def rd(k): a(f"ds_read_b128 {vr(RING+4*(k%4),4)}, v{vA0} offset:{1024*k}", tag=("o", k))
        for k in range(3): rd(k)
        a.background(background, 2)
        for k in range(32):
            a.wait(lg=("o", k))
            a(f"v_mfma_f32_32x32x16_bf16 {vr(XRES,16)}, {ar(abase+4*k,4)}, {vr(RING+4*(k%4),4)}, {vr(XRES,16)}")
            if k + 3 < 32: rd(k + 3)
        assert not a.bg
        if layer < 4:
            self.pack16(EP, XRES)
            self.publish_x(layer)
            a("s_waitcnt vmcnt(0)")
            self.flag(sFXW, True)
            a.label(Ljoin)
            def emit():
                for f in background: f()
                a(f"s_waitcnt vmcnt(0)\ns_branch {Ljoin}")
            self.stub(Lskip, emit)
            a(f"v_and_b32 v{vT0}, 15, v0\nv_min_u32 v{vT0}, 13, v{vT0}\nv_lshlrev_b32 v{vT0}, 2, v{vT0}")
            a("s_barrier")
            self.stamp("x flag")
            self.poll(vT0, sFXR, layer)
            self.stamp("x poll")
            self.x_loads(0, XPRE)
            if after: after()
        else:
            a(f"""v_and_b32 v{vT0}, 31, v0
            v_mul_u32_u24 v{vT0}, 896, v{vT0}
            v_lshrrev_b32 v{vT1}, 5, v0
            v_lshl_add_u32 v{vT0}, v{vT1}, 4, v{vT0}""")
            self.pack16(EP, XRES)
            a(f"""v_permlane32_swap_b32 v{EP}, v{EP+2}
            v_permlane32_swap_b32 v{EP+1}, v{EP+3}
            v_permlane32_swap_b32 v{EP+4}, v{EP+6}
            v_permlane32_swap_b32 v{EP+5}, v{EP+7}
            buffer_store_dwordx4 {vr(EP,4)}, v{vT0}, s[8:11], s{sOUT} offen
            buffer_store_dwordx4 {vr(EP+4,4)}, v{vT0}, s[8:11], s{sOUT} offen offset:32""")
            a.label(Lskip)

    def set_negmax(self, src):
        a = self.a; q = QF + 24
        a(f"""v_xor_b32 v{vT0}, 0x80000000, v{src}
        v_and_b32 v{vT1}, 0xffff0000, v{vT0}
        v_sub_f32 v{vT0}, v{vT0}, v{vT1}
        v_and_b32 v{vT2}, 0xffff0000, v{vT0}
        v_sub_f32 v{vT0}, v{vT0}, v{vT2}
        v_lshrrev_b32 v{vT1}, 16, v{vT1}""")
        self.upper()
        a(f"v_or_b32 v{q+6}, v{vT1}, v{vT2}\nv_lshrrev_b32 v{q+7}, 16, v{vT0}")
        self.full()
    def share_addr(self, j):
        a = self.a
        if j == 3:
            a(f"""s_lshl_b32 s{sT0}, s{sW}, 11
            s_add_u32 s{sT0}, s{sT0}, {L_QS}
            v_add_u32 v{vQA+3}, s{sT0}, v{vL16}
            s_mul_i32 s{sT0}, s{sW}, 12288
            s_add_u32 s{sT0}, s{sT0}, {L_ORED}
            v_add_u32 v{ADR+6}, s{sT0}, v{vL16}""")
            return
        a(f"""s_add_u32 s{sT0}, s{sW}, {j+1}
        s_and_b32 s{sT0}, s{sT0}, 3
        s_lshl_b32 s{sT1}, s{sT0}, 11
        s_add_u32 s{sT1}, s{sT1}, {L_QS}
        v_add_u32 v{vQA+j}, s{sT1}, v{vL16}
        s_mul_i32 s{sT0}, s{sT0}, 12288
        s_add_u32 s{sT0}, s{sT0}, {L_ORED + 4096*j}
        v_add_u32 v{ADR+3+j}, s{sT0}, v{vL16}""")
    def share_q(self):
        a = self.a; q = QF + 24
        a(f"""ds_write_b128 v{vQA+3}, {vr(q,4)}
        ds_write_b128 v{vQA+3}, {vr(q+4,4)} offset:1024
        s_waitcnt lgkmcnt(0)
        s_barrier""")
        for j in range(3):
            a(f"ds_read_b128 {vr(QF+8*j,4)}, v{vQA+j}", tag=("q", j))
            a(f"ds_read_b128 {vr(QF+8*j+4,4)}, v{vQA+j} offset:1024", tag=("q", j))
    def kv_load1(self, i, f):
        a = self.a; b = KVB[i % 4]
        if "nokv" in OPT and i > 3: return
        if "samekv" in OPT:
            a(f"buffer_load_dwordx4 {vr(b+4*f,4)}, v{vL16}, s[4:7], s{sKVO} offen offset:{1024*f}", tag=("K" if f < 2 else "V", i))
            return
        if f == 0: a(f"s_xor_b32 s{sKT}, s{sKVO}, {i << 14}")
        a(f"buffer_load_dwordx4 {vr(b+4*f,4)}, v{vL16}, s[4:7], s{sKT} offen offset:{1024*f} sc1", tag=("K" if f < 2 else "V", i))

    def layer_B(self, it):
        a = self.a; layer = 2 * it + 2
        KF = KVB[0]; VF = KF + 8
        self.gemm_kv(1)
        self.stamp("B gemm kv")
        self.stats()
        self.scale16(ACCV, vRS)
        self.upper(); a(f"v_mov_b32 v{ACCV+12}, 1.0"); self.full()
        self.pack16(EP, ACCV)
        for j in range(4):
            if j: a(f"v_xor_b32 v{vA0}, {16*j}, v{ADR}")
            a(f"ds_write_b64 v{vA0 if j else ADR}, {vr(EP+2*j,2)}", tag="vt")
        self.scale16(ACCK, vRS)
        a.wait(lg="vt")
        for f in range(2):
            for r in range(2):
                a(f"ds_read_b64_tr_b16 {vr(VF+4*f+2*r,2)}, v{ADR+1+r} offset:{1024*f}", tag="vtr")
        self.upper()
        a(f"v_mov_b32 v{ACCK+12}, 1.0\nv_mov_b32 v{ACCK+13}, 1.0\nv_mov_b32 v{ACCK+14}, 1.0")
        self.full()
        self.pack16(KF, ACCK)
        if it: a(f"s_add_u32 s{sKVO}, s{sKVO}, 0x400000\ns_add_u32 s{sFKVW}, s{sFKVW}, 8192\ns_add_u32 s{sFKVR}, s{sFKVR}, 8192")
        a.wait(lg="vtr")
        for f in (2, 3, 0, 1):
            a(f"buffer_store_dwordx4 {vr(KF+4*f,4)}, v{vL16}, s[4:7], s{sKVO} offen offset:{1024*f} sc1", tag="kvst")
        self.flag_prep(0)
        self.stamp("B kv stored")
        def hook():
            a.wait(vm="kvst")
            self.flag(sFKVW, False)
        def fill(ks):
            if it == 0 and ks % 2 == 1 and ks // 2 < self.wob_done: self.wo_load(sWOB, 128, ks // 2, ks // 2 + 1, tag="bg")
            if ks < 4: self.share_addr(ks)
            if ks == 4: a(f"v_and_b32 v{vPO}, 15, v0\nv_lshlrev_b32 v{vPO}, 2, v{vPO}\nv_mov_b32 v{vIDX}, 0xdddddddd")
            if 9 <= ks <= 24:
                for r in range(4): a(f"v_mov_b32 v{X+4*(ks-1)+r}, 0")
        self.gemm_q(1, ACCK, hook, 22, fill)
        self.stamp("B q gemm+flag")
        q = QF + 24
        self.center(ACCK, EP, 2)
        self.scale16(ACCK, vRS)
        self.pack16(q, ACCK)
        a(f"s_mov_b32 s{sRETRY}, 0")
        a(f"v_mfma_f32_32x32x16_bf16 {vr(ACCV,16)}, {vr(KF,4)}, {vr(q,4)}, 0")
        a(f"v_mfma_f32_32x32x16_bf16 {vr(ACCV,16)}, {vr(KF+4,4)}, {vr(q+4,4)}, {vr(ACCV,16)}")
        self.tree3("v_max3_f32", vM, list(range(ACCV, ACCV + 16)))
        a(f"""v_mov_b32 v{vT2}, v{vM}
        v_permlane32_swap_b32 v{vM}, v{vT2}
        v_max_f32 v{vM}, v{vM}, v{vT2}""")
        Lre = a.newlabel("attn")
        a.label(Lre)
        self.set_negmax(vM)
        self.share_q()
        a(f"buffer_load_dword v{vFL}, v{vPO}, s[4:7], s{sFKVR} offen sc1", tag="apoll")
        self.stamp("B q shared")
        self.attention(it)
        self.stamp("B attention")
        self.finish_attention(layer, Lre)
        a.wait(vm="ost")
        self.flag(sFOW, True)
        self.stamp("B o flag")
        self.wo_phase(layer, 128, (), self.addr_A)

    def attention(self, it):
        a = self.a
        def qk(n, part):
            i, j = divmod(n, 4); s = SB[n % 3]; k = KVB[i % 4] + 4 * part
            if part == 0:
                if j == 0 and i: a.wait(vm=("K", i))
                if i == 0 and j < 3: a.wait(lg=("q", j))
            c = vr(s, 16) if part else "0"
            a(f"v_mfma_f32_32x32x16_bf16 {vr(s,16)}, {vr(k,4)}, {vr(QF+8*j+4*part,4)}, {c}")
        def pv(n, part):
            i, j = divmod(n, 4); s = SB[n % 3] + 8 * part; v = KVB[i % 4] + 8 + 4 * part
            if part == 0 and j == 0 and i: a.wait(vm=("V", i))
            a(f"v_smfmac_f32_32x32x32_bf16 {vr(OA+16*j,16)}, {vr(v,4)}, {vr(s,8)}, v{vIDX}")
        def ex(n, g):
            s = SB[n % 3] + 4 * g
            for r in range(4): a(f"v_exp_f32 v{s+r}, v{s+r}")
        def owrite(j, qq):
            a(f"ds_write_b128 v{ADR+3+j}, {vr(OA+16*j+4*qq,4)} offset:{1024*qq}", tag="ored")
        sched = {}
        if it == 0 and "nobg" not in OPT:
            wob = [(lambda k=k: self.wo_load(sWOB, 128, k, k + 1, tag="bg")) for k in range(self.wob_done, 32)]
            wa = [(lambda i=i: self.wdma(sWA, i, i + 1, tag="bg")) for i in range(21)]
            def spread(items, n0, n1):
                for t, f in enumerate(items):
                    sched.setdefault(n0 + (t * (n1 - n0)) // len(items), []).append(f)
            S = os.environ.get("SCHED", "5")
            if S == "1": spread(wob, 12, 44); spread(wa[:8], 44, 52); spread(wa[8:], 52, 59)
            elif S == "2": spread(wob, 8, 60); spread(wa, 8, 60)
            elif S == "3": spread(wob, 12, 50); spread(wa, 40, 61)
            elif S == "4": spread(wa, 10, 52); spread(wob, 30, 62)
            elif S == "5": spread(wa[:14], 20, 62); spread(wob, 10, 62); self.wa_left = wa[14:]
        def bgslot(n, last=False):
            q = sched.get(n, [])
            if q: q.pop(0)()
            while last and q: q.pop(0)()
        early = [(i, f) for i in (1, 2, 3) for f in range(4)]
        def slot():
            if early: self.kv_load1(*early.pop(0))
        qk(0, 0); qk(0, 1); qk(1, 0); qk(1, 1)
        for n in range(64):
            i, j = divmod(n, 4)
            if n == KVPOLL_AT:
                Ld = a.newlabel("kvok"); Lp = a.newlabel("kvwait")
                a.wait(vm="apoll")
                a(f"v_cmp_ne_u32 vcc, s{sTAG}, v{vFL}\ns_cbranch_vccnz {Lp}")
                a.label(Ld)
                def emit(Ld=Ld):
                    self.poll(vPO, sFKVR, 0)
                    a(f"s_branch {Ld}")
                self.stub(Lp, emit)
                self.stamp("B kv poll")
                self.kv_load1(*early.pop(0)); self.kv_load1(*early.pop(0))
            if n == 4:
                qk(4, 0); qk(4, 1); qk(5, 0); qk(5, 1)
            if "fine" in OPT and n in (5, 8, 20, 32, 44, 52, 60): self.stamp(f"B att n={n}")
            look = n + 2 < 64 and n not in (2, 3)
            ex(n, 0)
            if n: pv(n - 1, 1)
            if n >= KVPOLL_AT and early: slot()
            elif 1 <= i <= 12: self.kv_load1(i + 3, j)
            if n >= 62: owrite(n - 62, 0)
            ex(n, 1)
            if look: qk(n + 2, 0)
            if n >= KVPOLL_AT: slot()
            bgslot(n)
            if n == 51 and "notouch" not in OPT: self.touch_ox(vT0)
            if n >= 62: owrite(n - 62, 1)
            ex(n, 2)
            pv(n, 0)
            if n >= KVPOLL_AT and early: slot()
            bgslot(n)
            if n >= 62: owrite(n - 62, 2)
            ex(n, 3)
            if look: qk(n + 2, 1)
            if n >= KVPOLL_AT: slot()
            bgslot(n, True)
            if n >= 62: owrite(n - 62, 3)
            if n == 3: assert not early
        pv(63, 1)
        for qq in range(4): owrite(2, qq)

    def finish_attention(self, layer, Lre):
        a = self.a; o = OA + 48
        Lslow = a.newlabel("slowmax"); Lok = a.newlabel("maxok")
        a(f"""s_lshl_b32 s{sT1}, s{sW}, 2
        s_add_u32 s{sT1}, s{sT1}, {L_VT}
        v_mov_b32 v{vA0+1}, s{sT1}
        v_mov_b32 v{vA0+2}, {L_VT}
        v_max3_f32 v{vT0}, v{OA+12}, v{OA+28}, v{OA+44}
        v_max_f32 v{vT0}, v{vT0}, v{OA+60}
        v_cmp_ngt_f32 vcc, {f2u(self.lmax)}, v{vT0}
        s_and_b64 vcc, vcc, s[{sUP}:{sUP+1}]
        s_cselect_b32 s{sT1}, 1, 0
        v_mov_b32 v{vT1}, s{sT1}
        ds_write_b32 v{vA0+1}, v{vT1}
        s_waitcnt lgkmcnt(0)
        s_barrier""")
        a(f"ds_read_b128 {vr(vT0,4)}, v{vA0+2}", tag="bad")
        for j in range(3):
            for qq in range(4):
                a(f"ds_read_b128 {vr(OA+16*j+4*qq,4)}, v{ADR+6} offset:{4096*j+1024*qq}", tag=("or", j))
        a.wait(lg="bad")
        a(f"""v_or3_b32 v{vT0}, v{vT0}, v{vT1}, v{vT2}
        v_or_b32 v{vT0}, v{vT0}, v{vT3}
        v_cmp_lt_u32 vcc, s{sRETRY}, v{vT0}
        s_cbranch_vccnz {Lslow}""")
        self.slow.append((Lslow, Lre))
        for j in range(3):
            a.wait(lg=("or", j))
            for p in range(8):
                a(f"v_pk_add_f32 {vr(o+2*p,2)}, {vr(o+2*p,2)}, {vr(OA+16*j+2*p,2)}")
        self.bcast_up_rcp(o + 12)
        self.publish_o(o, layer)
        a("s_barrier")

    def slow_max(self, Lslow, Lre):
        a = self.a
        a.flush_hist(); a.vm = []; a.lg = []
        a.label(Lslow)
        L = a.newlabel("smx")
        a(f"s_waitcnt vmcnt(0) lgkmcnt(0)\ns_mov_b32 s{sRETRY}, 1\ns_mov_b32 s{sT2}, 0")
        for j in range(4): a(f"v_mov_b32 v{OA+j}, 0xff800000")
        a.label(L)
        a(f"""s_xor_b32 s{sKT}, s{sKVO}, s{sT2}
        buffer_load_dwordx4 {vr(KVB[1],4)}, v{vL16}, s[4:7], s{sKT} offen sc1
        buffer_load_dwordx4 {vr(KVB[1]+4,4)}, v{vL16}, s[4:7], s{sKT} offen offset:1024 sc1
        s_waitcnt vmcnt(0)""")
        for j in range(4):
            a(f"v_mfma_f32_32x32x16_bf16 {vr(SB[0],16)}, {vr(KVB[1],4)}, {vr(QF+8*j,4)}, 0")
            a(f"v_mfma_f32_32x32x16_bf16 {vr(SB[0],16)}, {vr(KVB[1]+4,4)}, {vr(QF+8*j+4,4)}, {vr(SB[0],16)}")
            for p in range(8): a(f"v_max3_f32 v{OA+j}, v{OA+j}, v{SB[0]+2*p}, v{SB[0]+2*p+1}")
        a(f"""s_add_u32 s{sT2}, s{sT2}, 0x4000
        s_cmp_lt_u32 s{sT2}, 0x40000
        s_cbranch_scc1 {L}""")
        for j in range(4):
            a(f"""s_add_u32 s{sT0}, s{sW}, {j+1}
            s_and_b32 s{sT0}, s{sT0}, 3
            s_lshl_b32 s{sT0}, s{sT0}, 10
            s_add_u32 s{sT0}, s{sT0}, {L_VT + 1024 + 256*j}
            v_lshl_add_u32 v{vT0}, v0, 2, s{sT0}
            ds_write_b32 v{vT0}, v{OA+j}""")
        a(f"""s_lshl_b32 s{sT0}, s{sW}, 10
        s_add_u32 s{sT0}, s{sT0}, {L_VT + 1024}
        v_lshl_add_u32 v{vT0}, v0, 2, s{sT0}
        s_waitcnt lgkmcnt(0)
        s_barrier""")
        for j in range(4): a(f"ds_read_b32 v{OA+4+j}, v{vT0} offset:{256*j}")
        for f in range(4):
            a(f"buffer_load_dwordx4 {vr(KVB[0]+4*f,4)}, v{vL16}, s[4:7], s{sKVO} offen offset:{1024*f} sc1")
        a(f"""s_waitcnt vmcnt(0) lgkmcnt(0)
        v_max3_f32 v{vT0}, v{OA+4}, v{OA+5}, v{OA+6}
        v_max_f32 v{vT0}, v{vT0}, v{OA+7}
        v_mov_b32 v{vT1}, v{vT0}
        v_permlane32_swap_b32 v{vT0}, v{vT1}
        v_max_f32 v{vT0}, v{vT0}, v{vT1}
        v_add_f32 v{vM}, v{vM}, v{vT0}""")
        for r in range(64): a(f"v_mov_b32 v{OA+r}, 0")
        a(f"s_branch {Lre}")

    def finish(self):
        a = self.a
        if self.stamps:
            self.stamp("end")
            a(f"""s_lshl_b32 s{sT0}, s2, 2
            s_add_u32 s{sT0}, s{sT0}, s{sW}
            s_lshl_b32 s{sT0}, s{sT0}, 8
            s_add_u32 s{sT0}, s{sT0}, {DBG}
            v_lshlrev_b32 v{vT0}, 2, v0
            buffer_store_dword v7, v{vT0}, s[4:7], s{sT0} offen""")
        a(f"""s_add_u32 s{sT0}, s2, s{sW}
        s_cmp_lg_u32 s{sT0}, 0
        s_cbranch_scc1 {self.name}_end
        s_mov_b64 exec, 1
        v_mov_b32 v{vT0}, s{sTAG}
        s_mov_b32 s{sT0}, {GEN}
        buffer_store_dword v{vT0}, off, s[4:7], s{sT0}""")
        a.label(f"{self.name}_end")
        a("s_endpgm")
        for l in self.slow: self.slow_max(*l)
        while self.stubs:
            l, emit = self.stubs.pop(0)
            a.flush_hist(); a.vm = []; a.lg = []; a.bg_hold = True
            a.label(l); emit()
        a.label(f"{self.name}_last")

    def build(self):
        self.startup()
        for it in range(2):
            self.layer_A(it)
            self.layer_B(it)
        self.finish()
        return self.a.text()
```

```python
import sys
from mainker import Gen
from layout import *
from align import align
import os
NAME = "interleave_layers__linear_kernel_hedgehog__mha_block__prompt"
def kd(name, vgpr, accum, sgpr):
    return f""".amdhsa_kernel {name}
  .amdhsa_next_free_vgpr {vgpr}
  .amdhsa_next_free_sgpr {sgpr}
  .amdhsa_accum_offset {accum}
  .amdhsa_group_segment_fixed_size 0
  .amdhsa_kernarg_size 80
  .amdhsa_user_sgpr_count 2
  .amdhsa_user_sgpr_kernarg_segment_ptr 1
  .amdhsa_system_sgpr_workgroup_id_x 1
.end_amdhsa_kernel
"""
def build(stamps=False, log=False, force=False):
    ref = open(f"cdna_kernels/{NAME}.s.ref").read().split("\n")
    head = [l for l in ref if l.startswith(";") and "@launch" not in l and "Override" not in l and "grid=ceil" not in l]
    g = Gen(NAME + "_kernel", stamps=stamps); g.a.log_nops = log
    if force: g.lmax = 4.0
    main = g.build()
    if 'noalign' not in os.environ.get('OPTS', ''):
        main, fixed, left = align(main)
        if log: print('aligned', fixed, 'left', left)
    t = "\n".join(head) + "\n"
    t += f"; @launch grid=(256,1,1) block=(256,1,1) lds={LDS_BYTES}\n"
    t += '.amdgcn_target "amdgcn-amd-amdhsa--gfx950"\n.text\n'
    for n, body in ((NAME + "_kernel", main),):
        t += f".globl {n}\n.p2align 8\n.type {n},@function\n" + body
    t += '.section .rodata,"a"\n.p2align 6\n' + kd(NAME + "_kernel", 512, 256, 102)
    return t, g
if __name__ == "__main__":
    stamps = "real" if "--real" in sys.argv else ("--stamps" in sys.argv)
    t, g = build(stamps, "--log" in sys.argv, "--force" in sys.argv)
    out = [x for x in sys.argv[1:] if not x.startswith("--")]
    p = out[0] if out else f"cdna_kernels/{NAME}.s"
    open(p, "w").write(t)
    if stamps: open(p + ".names", "w").write("\n".join(g.names))
    print("written", p, len(t), "bytes; nop states", g.a.nops)
```

```python
from asmlib import *
from layout import *
import struct
import os
OPT = set(os.environ.get('OPTS', '').split(','))

def f2u(x): return struct.unpack("<I", struct.pack("<f", x))[0]
def srd(a, d, ptr, size):
    a(f"""s_mov_b32 s{d}, s{ptr}
    s_mov_b32 s{d+1}, s{ptr+1}
    s_mov_b32 s{d+2}, {size}
    s_mov_b32 s{d+3}, 0x00020000""")

sRB, sH, sW, sFAST = 12, 13, 14, 16
sT0, sT1, sT2, sT3 = 17, 18, 19, 20
sXRD, sWA, sWB, sOWR, sORD, sXWR, sACT = 30, 31, 32, 33, 34, 35, 36
sKVPW, sKVPR, sKVO = 37, 38, 39
sFKVPW, sFKVPR, sFKVW, sFKVR, sFOW, sFOR, sFXW, sFXR = 40, 41, 42, 43, 44, 45, 46, 47
sWOA, sWOB, sM0W, sTO, sXCC = 48, 49, 50, 51, 52
sUP = 54
sTAG, sEXP, sSSW, sSSR, sC = 56, 57, 58, 59, 60
sST = 62
sOUT = 65
sXT = 66
sBG, sBG1, sKT, sRETRY = 67, 68, 69, 70
XPRE = int(os.environ.get('XPRE', 8))
vL16, vT0, vT1, vT2, vT3, vDUM = 1, 2, 3, 4, 5, 6
vIDX = 246
vFL = 9
vRS = 8
vC = 10
vA0 = 12
XRES = 16
X = 32
ACCK, ACCV = 144, 160
RING = 176
ACCS = 200
EP, EM = 208, 224
PHQ = 240
ADR = 248
QF, OA = 32, 64
SB = [128, 144, 160]
KVB = [224, 176, 192, 208]
vM, vPO = 240, 241
vQA = 242
KVPOLL_AT = 1
vSX = 198
CSR = 240

class Gen:
    def __init__(self, name, stamps=False, stop_after=None):
        self.a = Asm(); self.name = name; self.stamps = stamps; self.nst = 0
        self.stop_after = stop_after
        self.stubs = []; self.slow = []; self.lmax = 2.0 ** 64
        self.wob_done = int(os.environ.get('WOBQ', 0)); self.wa_left = []
    def stamp(self, label, again=False):
        amp = os.environ.get("AMP")
        if amp is not None:
            self.cnt = getattr(self, "cnt", -1) + 1
            if str(self.cnt) == amp:
                self.a(f"s_memrealtime s[{sST}:{sST+1}]\ns_waitcnt lgkmcnt(0)\nv_sub_u32 v7, s{sST}, v7")
            return
        if not self.stamps: return
        a = self.a
        names = getattr(self, "names", [])
        if again:
            a(f"s_mem{'real' if self.stamps == 'real' else ''}time s[{sST}:{sST+1}]\ns_waitcnt lgkmcnt(0)")
            a(f"v_writelane_b32 v7, s{sST}, {names.index(label)}")
            return
        if self.stamps == "real":
            a(f"s_memrealtime s[{sST}:{sST+1}]\ns_waitcnt lgkmcnt(0)")
        else:
            a(f"s_memtime s[{sST}:{sST+1}]\ns_waitcnt lgkmcnt(0)")
        a(f"v_writelane_b32 v7, s{sST}, {self.nst}")
        self.names = getattr(self, "names", []) + [label]
        self.nst += 1
    def upper(self):
        self.a.bg_hold = True; self.a(f"s_mov_b64 exec, s[{sUP}:{sUP+1}]")
    def full(self):
        self.a("s_mov_b64 exec, -1"); self.a.bg_hold = False
    def stub(self, label, emit):
        self.stubs.append((label, emit))
    def retry(self, L, sleep=0):
        a = self.a
        Lr = a.newlabel("retry")
        a(f"s_cbranch_vccnz {Lr}")
        self.stub(Lr, lambda: a(f"""{"s_sleep " + str(sleep) if sleep else ""}
        s_sub_u32 s{sTO}, s{sTO}, 1
        s_cmp_lg_u32 s{sTO}, 0
        s_cbranch_scc1 {L}
        s_endpgm"""))
    def poll(self, voff, soff, step, sleep=0):
        a = self.a
        L = a.newlabel("poll")
        e = sTAG
        if step: a(f"s_add_u32 s{sEXP}, s{sTAG}, {step}"); e = sEXP
        so = f"s{soff}" if soff is not None else "0"
        a.label(L)
        a(f"""buffer_load_dword v{vT3}, v{voff}, s[4:7], {so} offen sc1
        s_waitcnt vmcnt(0)
        v_cmp_ne_u32 vcc, s{e}, v{vT3}""")
        self.retry(L, sleep)
    def dual(self, lines, tag=None):
        a = self.a
        Ls = a.newlabel("slow"); Lj = a.newlabel("join")
        a(f"s_cmp_eq_u32 s{sFAST}, 1\ns_cbranch_scc0 {Ls}")
        for l in lines: a(l, tag=tag)
        a.label(Lj)
        def emit():
            for l in lines: a(l + " sc1")
            a(f"s_branch {Lj}")
        self.stub(Ls, emit)
    def flag_prep(self, step):
        a = self.a
        if step: a(f"s_add_u32 s{sEXP}, s{sTAG}, {step}\nv_mov_b32 v{vFL}, s{sEXP}")
        else: a(f"v_mov_b32 v{vFL}, s{sTAG}")
    def flag(self, soff, intra):
        a = self.a
        a.bg_hold = True
        a(f"s_mov_b64 exec, 1")
        l = f"buffer_store_dword v{vFL}, off, s[4:7], s{soff}"
        if intra: self.dual([l], tag="flag")
        else: a(l + " sc1", tag="flag")
        self.full()
    def wdma(self, src, i0, i1, tag="wdma"):
        a = self.a
        for i in range(i0, i1):
            a(f"s_add_u32 m0, s{sM0W}, {4096*i}")
            a(f"s_add_u32 s{sBG}, s{src}, {4096*i}")
            a(f"buffer_load_dwordx4 v{vL16}, s[4:7], s{sBG} offen sc1 lds", tag=tag)
    def wo_load(self, src, abase, k0, k1, tag="wo"):
        a = self.a
        for k in range(k0, k1):
            if k % 4 == 0: a(f"s_add_u32 s{sBG1}, s{src}, {4096*(k//4)}")
            a(f"buffer_load_dwordx4 {ar(abase+4*k,4)}, v{vL16}, s[4:7], s{sBG1} offen offset:{1024*(k%4)} sc1", tag=tag)
    def touch_ox(self, vt):
        a = self.a
        a(f"""v_and_b32 v{vt}, 15, v0
        v_lshlrev_b32 v{vt}, 7, v{vt}
        v_mov_b32 v{vt+1}, s{sOWR}
        v_mov_b32 v{vt+2}, s{sXWR}
        v_cndmask_b32 v{vt+1}, v{vt+1}, v{vt+2}, s[{sUP}:{sUP+1}]
        v_add_u32 v{vt}, v{vt}, v{vt+1}
        v_writelane_b32 v{vt}, s{sSSW}, 16
        buffer_load_dword v{vDUM}, v{vt}, s[4:7], 0 offen sc1""", tag="touch")
    def ss_loads(self):
        a = self.a
        def first():
            a(f"""v_lshrrev_b32 v{vT0}, 5, v0
            v_mul_u32_u24 v{vT0}, {7*128}, v{vT0}
            v_and_b32 v{vT1}, 31, v0
            v_lshl_add_u32 v{vT0}, v{vT1}, 2, v{vT0}""")
        def ld(i):
            if i == 0: first()
            a(f"buffer_load_dword v{ACCS+i}, v{vT0}, s[4:7], s{sSSR} offen offset:{128*i} sc1", tag="ss")
        return [(lambda i=i: ld(i)) for i in range(7)]
    def publish_x(self, step, direct=False):
        a = self.a
        dual = self.dual
        if direct: dual = lambda lines, tag: [a(l + " sc1", tag=tag) for l in lines]
        dual([f"buffer_store_dwordx4 {vr(EP,4)}, v{vL16}, s[4:7], s{sXWR} offen",
                   f"buffer_store_dwordx4 {vr(EP+4,4)}, v{vL16}, s[4:7], s{sXWR} offen offset:1024"], tag="xst")
        a(f"v_pk_mul_f32 {vr(vT0,2)}, {vr(XRES,2)}, {vr(XRES,2)}")
        a(f"v_pk_mul_f32 {vr(vT2,2)}, {vr(XRES+2,2)}, {vr(XRES+2,2)}")
        for p in range(2, 8):
            t = vT0 + 2 * (p & 1)
            a(f"v_pk_fma_f32 {vr(t,2)}, {vr(XRES+2*p,2)}, {vr(XRES+2*p,2)}, {vr(t,2)}")
        a(f"""v_pk_add_f32 {vr(vT0,2)}, {vr(vT0,2)}, {vr(vT2,2)}
        v_add_f32 v{vT0}, v{vT0}, v{vT1}
        v_mov_b32 v{vT1}, v{vT0}
        v_and_b32 v{vT2}, 31, v0
        v_lshlrev_b32 v{vT2}, 2, v{vT2}
        v_permlane32_swap_b32 v{vT0}, v{vT1}
        v_add_f32 v{vT0}, v{vT0}, v{vT1}""")
        dual([f"buffer_store_dword v{vT0}, v{vT2}, s[4:7], s{sSSW} offen"], tag="xst")
        self.flag_prep(step)
    def touch_w(self, src, vt):
        a = self.a
        a(f"""s_and_b32 s{sBG}, s{sRB}, 1
        s_lshl_b32 s{sBG}, s{sBG}, 2
        s_add_u32 s{sBG}, s{sBG}, s{sW}
        s_mul_i32 s{sBG}, s{sBG}, {84*128}
        s_add_u32 s{sBG}, s{sBG}, s{src}
        s_sub_u32 s{sBG}, s{sBG}, s{sM0W}
        v_lshlrev_b32 v{vt}, 7, v0
        buffer_load_dword v{vDUM}, v{vt}, s[4:7], s{sBG} offen
        v_min_u32 v{vt}, {19*128}, v{vt}
        s_add_u32 s{sBG}, s{sBG}, 8192
        buffer_load_dword v{vDUM}, v{vt}, s[4:7], s{sBG} offen""", tag="touch")
    def x_loads(self, k0, k1):
        a = self.a
        for ks in range(k0, k1):
            if ks % 4 == 0: a(f"s_add_u32 s{sXT}, s{sXRD}, {4096*(ks//4)}")
            a(f"buffer_load_dwordx4 {vr(X+4*ks,4)}, v{vL16}, s[4:7], s{sXT} offen offset:{1024*(ks%4)} sc1", tag=("x", ks))

    def identity_b(self, vb):
        a = self.a; vt = vT0
        a(f"""v_lshlrev_b32 v{vt}, 3, v{vA0+1}
        v_sub_u32 v{vt}, v{vA0}, v{vt}
        v_mov_b32 v10, 0x3f80
        v_mov_b32 v11, 0x3f800000""")
        for sub in range(2):
            for p in range(4):
                d0 = 16 * sub + 2 * p; r = vb + 4 * sub + p
                a(f"""v_cmp_eq_u32 vcc, {d0}, v{vt}
                v_cmp_eq_u32 s[28:29], {d0+1}, v{vt}
                v_cndmask_b32 v{r}, 0, v10, vcc
                v_cndmask_b32 v{r}, v{r}, v11, s[28:29]""")

    def startup(self):
        a = self.a; n = self.name
        TL, TD, TP, TB, TG = 32, 64, 128, 160, 184
        a.label(n)
        if os.environ.get("AMP") is not None:
            a(f"s_memrealtime s[{sST}:{sST+1}]\ns_waitcnt lgkmcnt(0)\nv_mov_b32 v7, s{sST}")
        a(f"""s_cmp_ge_u32 s2, 256
        s_cbranch_scc1 {n}_end
        s_load_dwordx8 s[72:79], s[0:1], 0
        s_load_dwordx4 s[80:83], s[0:1], 40
        s_load_dwordx2 s[84:85], s[0:1], 56
        s_load_dwordx2 s[86:87], s[0:1], 72""")
        if "nocode" not in OPT:
            a("s_getpc_b64 s[28:29]")
            a.label(f"{n}_pc")
            a(f"""s_lshr_b32 s{sT0}, s2, 3
            s_lshl_b32 s{sT0}, s{sT0}, 4
            s_add_u32 s{sT0}, s{sT0}, 128
            v_lshrrev_b32 v2, 1, v0
            v_lshrrev_b32 v3, 4, v0
            v_add_u32 v3, s{sT0}, v3
            v_and_b32 v4, 1, v0
            v_cmp_eq_u32 vcc, 1, v4
            v_cndmask_b32 v2, v2, v3, vcc
            v_lshlrev_b32 v2, 7, v2
            v_min_u32 v2, {n}_last-{n}_pc-4, v2
            global_load_dword v{vDUM}, v2, s[28:29]""")
        a(f"""v_lshrrev_b32 v2, 6, v0
        v_and_b32 v0, 63, v0
        v_readfirstlane_b32 s{sW}, v2
        v_lshlrev_b32 v{vL16}, 4, v0
        v_and_b32 v{vA0}, 31, v0
        v_lshrrev_b32 v{vA0+1}, 5, v0
        v_lshrrev_b32 v3, 2, v0
        v_mul_u32_u24 v{vA0+2}, 896, v3
        v_lshrrev_b32 v3, 4, v0
        v_xor_b32 v3, v3, v0
        v_and_b32 v3, 3, v3
        v_lshl_add_u32 v{vA0+2}, v3, 4, v{vA0+2}
        s_and_b32 s{sRB}, s2, 7
        s_lshl_b32 s{sRB}, s{sRB}, 1
        s_bfe_u32 s{sT0}, s2, 0x10003
        s_or_b32 s{sRB}, s{sRB}, s{sT0}
        s_lshr_b32 s{sH}, s2, 4
        s_lshl_b32 s{sM0W}, s{sW}, 10
        s_lshl_b32 s{sT0}, s{sRB}, 2
        s_add_u32 s{sT1}, s{sT0}, s{sW}
        s_lshr_b32 s{sT2}, s{sH}, 2
        s_add_u32 s{sT2}, s{sT2}, s{sT0}
        s_and_b32 s{sC}, s{sH}, 3
        s_lshl_b32 s{sC}, s{sC}, 2
        s_add_u32 s{sC}, s{sC}, s{sW}
        s_cmp_lt_u32 s{sC}, 14
        s_cselect_b32 s{sACT}, 1, 0
        s_min_u32 s{sC}, s{sC}, 13
        s_mul_i32 s{sOUT}, s{sT2}, {32*896}
        s_lshl_b32 s{sT3}, s{sC}, 6
        s_add_u32 s{sOUT}, s{sOUT}, s{sT3}
        s_mov_b32 s6, {WS_BYTES}
        s_mov_b32 s7, 0x00020000
        s_mov_b32 s10, {S*D*2}
        s_mov_b32 s11, 0x00020000
        s_mov_b32 s91, 0x00020000
        s_mov_b32 s94, {S*D*2}
        s_mov_b32 s95, 0x00020000
        s_mov_b32 s{sUP}, 0
        s_mov_b32 s{sUP+1}, -1
        s_mov_b32 s{sFAST}, 0
        s_mov_b32 s{sTO}, 0x400000""")
        a(f"""s_mul_i32 s{sXRD}, s{sT1}, 28672
        s_add_u32 s{sXRD}, s{sXRD}, {XF}
        s_lshl_b32 s{sSSR}, s{sT1}, 11
        s_add_u32 s{sSSR}, s{sSSR}, {SS}
        s_lshl_b32 s{sOWR}, s{sT1}, 4
        s_add_u32 s{sOWR}, s{sOWR}, s{sH}
        s_lshl_b32 s{sOWR}, s{sOWR}, 11
        s_add_u32 s{sOWR}, s{sOWR}, {OF}
        s_lshl_b32 s{sFOW}, s{sT1}, 7
        s_add_u32 s{sFXR}, s{sFOW}, {F_X}
        s_lshl_b32 s{sT3}, s{sH}, 2
        s_add_u32 s{sFOW}, s{sFOW}, s{sT3}
        s_add_u32 s{sFOW}, s{sFOW}, {F_O}
        s_lshl_b32 s{sORD}, s{sT2}, 15
        s_lshl_b32 s{sT3}, s{sW}, 13
        s_add_u32 s{sORD}, s{sORD}, s{sT3}
        s_add_u32 s{sORD}, s{sORD}, {OF}
        s_lshl_b32 s{sFOR}, s{sT2}, 7
        s_add_u32 s{sFXW}, s{sFOR}, {F_X}
        s_lshl_b32 s{sT3}, s{sW}, 4
        s_add_u32 s{sFOR}, s{sFOR}, s{sT3}
        s_add_u32 s{sFOR}, s{sFOR}, {F_O}
        s_mul_i32 s{sXWR}, s{sT2}, 28672
        s_lshl_b32 s{sT3}, s{sC}, 11
        s_add_u32 s{sXWR}, s{sXWR}, s{sT3}
        s_add_u32 s{sXWR}, s{sXWR}, {XF}
        s_lshl_b32 s{sSSW}, s{sT2}, 11
        s_lshl_b32 s{sT3}, s{sC}, 7
        s_add_u32 s{sSSW}, s{sSSW}, s{sT3}
        s_add_u32 s{sSSW}, s{sSSW}, {SS}
        s_lshl_b32 s{sT3}, s{sC}, 2
        s_add_u32 s{sFXW}, s{sFXW}, s{sT3}
        s_lshl_b32 s{sT3}, s{sC}, 15
        s_add_u32 s{sWOA}, s{sT3}, {WO_A}
        s_add_u32 s{sWOB}, s{sT3}, {WO_B}
        s_mul_i32 s{sT0}, s{sH}, {WF_HEAD}
        s_add_u32 s{sT0}, s{sT0}, s{sM0W}
        s_add_u32 s{sWA}, s{sT0}, {WF_A}
        s_add_u32 s{sWB}, s{sT0}, {WF_B}
        s_waitcnt lgkmcnt(0)
        s_load_dword s{sTAG}, s[86:87], {GEN}
        s_mov_b32 s4, s86
        s_mov_b32 s5, s87
        s_mov_b32 s8, s84
        s_mov_b32 s9, s85
        s_mov_b32 s92, s72
        s_mov_b32 s93, s73""")
        if self.stamps: a("v_mov_b32 v7, 0")
        self.stamp("start")
        LX, LT, LP = 114688, 122880, 139264
        vG, vR = vA0 + 2, TG
        def stage(srdq, voff, soff, m0base, imm, tag):
            a(f"s_add_u32 m0, s{m0base}, {imm}")
            a(f"buffer_load_dwordx4 v{voff}, s[{srdq}:{srdq+3}], s{soff} offen lds", tag=tag)
        a(f"""s_lshl_b32 s21, s{sW}, 11
        s_add_u32 s27, s21, {LP}
        s_add_u32 s21, s21, {LX}
        s_add_u32 s22, s{sOUT}, {16*896}
        s_lshl_b32 s3, s{sW}, 12
        s_add_u32 s3, s3, {LT}""")
        stage(92, vG, sOUT, 21, 0, "x0"); stage(92, vG, 22, 21, 1024, "x0")
        a(f"""s_lshl_b32 s15, s{sRB}, 2
        s_add_u32 s15, s15, s{sW}
        s_cmp_ge_u32 s15, 42
        s_cselect_b32 s88, s80, s74
        s_cselect_b32 s89, s81, s75
        s_cselect_b32 s22, 42, 0
        s_cselect_b32 s23, 1, 0
        s_sub_u32 s22, s15, s22
        s_mov_b32 s90, {D*3*D*2}
        v_lshrrev_b32 v{vT0}, 2, v0
        v_mul_u32_u24 v{vT0}, {2688-896}, v{vT0}
        v_add_u32 v{vT1}, v{vT0}, v{vG}""")
        def wparams(unit, ab, dst, csd, scale, ones):
            a(f"""s_mul_i32 s24, s{unit}, 37
            s_lshr_b32 s24, s24, 9
            s_mul_i32 s25, s24, 14
            s_sub_u32 s25, s{unit}, s25
            s_mul_i32 s26, s25, {32*2688}
            s_mul_i32 s{dst}, s{sH}, 56
            s_add_u32 s26, s26, s{dst}
            s_add_u32 s{dst}, s24, 1
            s_cmp_eq_u32 s{dst}, 3
            s_cselect_b32 s{dst}, 0, s{dst}
            s_mul_i32 s{dst}, s{dst}, 896
            s_add_u32 s26, s26, s{dst}
            s_lshl_b32 s{csd}, s{ab}, 4
            s_add_u32 s{csd}, s{csd}, s{sH}
            s_mul_i32 s{csd}, s{csd}, 3
            s_add_u32 s{csd}, s{csd}, s24
            s_mul_i32 s{dst}, s{csd}, 28672
            s_lshl_b32 s{csd}, s{csd}, 4
            s_add_u32 s{csd}, s{csd}, s25
            s_lshl_b32 s{csd}, s{csd}, 7
            s_add_u32 s{csd}, s{csd}, {CS}
            s_lshl_b32 s25, s25, 11
            s_add_u32 s{dst}, s{dst}, s25
            s_add_u32 s{dst}, s{dst}, {WF_A}
            s_cmp_eq_u32 s{ab}, 0
            s_mov_b32 s{scale}, {f2u(1.0)}
            s_cmov_b32 s{scale}, {f2u(LOG2E)}
            s_mov_b32 s25, {f2u(LOG2E*DH**-0.5)}
            s_cmov_b32 s25, {f2u(LOG2E)}
            s_cmp_eq_u32 s24, 2
            s_cselect_b32 s{scale}, s25, s{scale}
            s_cmp_eq_u32 s24, 1
            s_cmov_b32 s{scale}, {f2u(1.0)}
            s_cmp_eq_u32 s24, 0
            s_cselect_b32 s{ones}, 28, 63""")
        assert WF_B == WF_A + 16 * WF_HEAD
        wparams(22, 23, 96, 97, 100, 101)
        stage(88, vT1, 26, 3, 0, "u1"); a(f"s_add_u32 s26, s26, {16*2688}"); stage(88, vT1, 26, 3, 1024, "u1")
        a(f"""s_lshl_b32 s25, s23, 1
        s_add_u32 s53, s25, s24
        s_mul_i32 s25, s{sH}, 1568
        s_add_u32 s92, s76, s25
        s_addc_u32 s93, s77, 0
        s_mov_b32 s94, 1568
        s_mov_b32 m0, s27
        s_mov_b32 s25, 0""")
        a(f"buffer_load_dwordx4 v{vL16}, s[92:95], s25 offen lds", tag="u1")
        a(f"buffer_load_dwordx4 v{vL16}, s[92:95], s25 offen offset:1024 lds", tag="u1")
        L2o, L2j = f"{n}_u2o", f"{n}_u2j"
        a(f"""s_mov_b32 s88, s80
        s_mov_b32 s89, s81
        s_mov_b32 s71, 28
        s_cmp_ge_u32 s15, 20
        s_cbranch_scc1 {L2o}
        s_add_u32 s22, s15, 22
        s_mov_b32 s23, 1""")
        wparams(22, 23, 98, 99, 61, 64)
        a(f"""s_mov_b32 s22, {16*2688}
        v_mov_b32 v{vT2}, v{vT1}
        s_branch {L2j}""")
        a.label(L2o); a.flush_hist()
        a(f"""s_sub_u32 s22, s15, 20
        s_cmp_ge_u32 s22, 14
        s_cselect_b32 s88, s82, s78
        s_cselect_b32 s89, s83, s79
        s_cselect_b32 s23, 14, 0
        s_mov_b32 s98, {WO_A}
        s_cmov_b32 s98, {WO_B}
        s_sub_u32 s22, s22, s23
        s_mov_b32 s90, {D*D*2}
        s_mul_i32 s26, s{sH}, {28*896}
        s_lshl_b32 s25, s22, 6
        s_add_u32 s26, s26, s25
        s_lshl_b32 s25, s22, 15
        s_add_u32 s98, s98, s25
        s_lshl_b32 s25, s{sH}, 11
        s_add_u32 s98, s98, s25
        s_mov_b32 s99, {WS_BYTES}
        s_mov_b32 s61, {f2u(1.0)}
        s_mov_b32 s64, 63
        s_mov_b32 s71, 32
        s_cmp_ge_u32 s15, 48
        s_cmov_b32 s98, {WS_BYTES}
        s_cmov_b32 s90, 0
        s_mov_b32 s22, {16*896}
        v_mov_b32 v{vT1}, v{vG}
        v_mov_b32 v{vT2}, 0x10000000
        v_cmp_gt_u32 vcc, 48, v0
        v_cndmask_b32 v{vT2}, v{vT2}, v{vG}, vcc""")
        a.label(L2j); a.flush_hist()
        stage(88, vT1, 26, 3, 2048, "u2"); a(f"s_add_u32 s26, s26, s22"); stage(88, vT2, 26, 3, 3072, "u2")
        self.early(vR)
        self.identity_b(TB + 8)
        self.x0_publish(vR, 21)
        self.stamp("x0 out")
        Lid, Lb = f"{n}_tid", f"{n}_tb"
        a(f"""v_bfe_u32 v{vT0}, v0, 2, 2
        v_lshl_add_u32 v{vT0}, v{vA0+1}, 3, v{vT0}
        v_mul_u32_u24 v{vT0}, 56, v{vT0}
        v_bfe_u32 v{vT1}, v0, 4, 1
        v_lshl_add_u32 v{vT0}, v{vT1}, 5, v{vT0}
        v_and_b32 v{vT1}, 3, v0
        v_lshl_add_u32 v{vT0}, v{vT1}, 3, v{vT0}
        v_add_u32 v{vT0}, s27, v{vT0}
        v_add_u32 v{vR+2}, s3, v{vR}
        v_add_u32 v{vR+3}, s3, v{vR+1}""")
        a.wait(vm="u1")
        for sub in range(2): a(f"ds_read_b128 {vr(TL+4*sub,4)}, v{vR+2+sub}")
        for sub in range(2):
            for rd in range(2):
                a(f"ds_read_b64_tr_b16 {vr(TB+4*sub+2*rd,2)}, v{vT0} offset:{(16*sub+4*rd)*56}")
        a(f"""s_waitcnt lgkmcnt(0)
        s_and_b32 s25, s53, 1
        s_cmp_lg_u32 s25, 0
        s_cbranch_scc1 {Lid}
        s_cmp_ge_u32 s15, 42
        s_cbranch_scc1 {Lid}""")
        a.label(Lb)
        def emit():
            for p in range(8): a(f"v_mov_b32 v{TB+p}, v{TB+8+p}")
            a(f"s_nop 1\ns_branch {Lb}")
        self.stub(Lid, emit)
        self.unit(TL, TD, TP, TB, 96, 97, 100, 101, "28", "u1st")
        self.stamp("u1 out")
        a.wait(vm="u2")
        for sub in range(2): a(f"ds_read_b128 {vr(TL+8+4*sub,4)}, v{vR+2+sub} offset:2048", tag="t2")
        a(f"""s_lshl_b32 s{sT0}, s{sH}, 4
        s_add_u32 s{sT0}, s{sT0}, s{sRB}
        s_lshl_b32 s{sT2}, s{sT0}, 2
        s_add_u32 s22, s{sT2}, {F_G2}
        s_lshl_b32 s{sT0}, s{sH}, 7
        s_lshl_b32 s{sT1}, s{sRB}, 2
        s_add_u32 s{sT0}, s{sT0}, s{sT1}
        s_add_u32 s{sT0}, s{sT0}, {F_G1H}
        s_lshl_b32 s{sT1}, s{sRB}, 7
        s_lshl_b32 s{sT2}, s{sH}, 2
        s_add_u32 s{sT1}, s{sT1}, s{sT2}
        s_add_u32 s{sT1}, s{sT1}, {F_G1R}
        v_mov_b32 v{vA0+3}, s{sT0}
        v_writelane_b32 v{vA0+3}, s{sT1}, 1""")
        a.wait(lg="t2")
        d2 = TD + 16
        a(f"v_mfma_f32_32x32x16_bf16 {vr(d2,16)}, {vr(TL+8,4)}, {vr(TB+8,4)}, 0")
        a(f"v_mfma_f32_32x32x16_bf16 {vr(d2,16)}, {vr(TL+12,4)}, {vr(TB+12,4)}, {vr(d2,16)}")
        Lnf = a.newlabel("nog1")
        a(f"""s_waitcnt vmcnt(0)
        s_barrier
        s_cmp_lg_u32 s{sW}, 0
        s_cbranch_scc1 {Lnf}
        s_mov_b64 exec, 3
        buffer_store_dword v{vFL}, v{vA0+3}, s[4:7], 0 offen sc1
        s_mov_b64 exec, -1""")
        a.label(Lnf)
        a.vm = []
        self.stamp("published")
        self.unit(TL + 8, d2, TP + 8, TB + 8, 98, 99, 61, 64, "s71", "u2st", mfma=False)
        a(f"""s_getreg_b32 s{sXCC}, hwreg(HW_REG_XCC_ID, 0, 4)
        s_add_u32 s{sXCC}, s{sXCC}, s{sTAG}
        s_add_u32 s{sXCC}, s{sXCC}, 1
        s_lshl_b32 s{sT0}, s{sRB}, 7
        s_lshl_b32 s{sT1}, s{sH}, 2
        s_add_u32 s{sT0}, s{sT0}, s{sT1}
        s_add_u32 s23, s{sT0}, {F_XCC}""")
        self.addr_A()
        a(f"""s_lshl_b32 s{sT0}, s{sH}, 7
        s_add_u32 s{sT0}, s{sT0}, {F_G1H}
        s_lshl_b32 s{sT1}, s{sRB}, 7
        s_add_u32 s{sT1}, s{sT1}, {F_G1R}
        v_mov_b32 v{vT0}, s{sT0}
        v_mov_b32 v{vT1}, s{sT1}
        v_cndmask_b32 v{vT0}, v{vT0}, v{vT1}, s[{sUP}:{sUP+1}]
        v_and_b32 v{vT1}, 15, v0
        v_lshl_add_u32 v{vT0}, v{vT1}, 2, v{vT0}
        s_waitcnt vmcnt(0)
        s_barrier""")
        Lw = a.newlabel("g1wait")
        a(f"""s_cmp_lg_u32 s{sW}, 0
        s_cbranch_scc1 {Lw}
        v_mov_b32 v{vA0+3}, s22
        v_writelane_b32 v{vA0+3}, s23, 1
        v_writelane_b32 v{vFL}, s{sXCC}, 1
        s_mov_b64 exec, 3
        buffer_store_dword v{vFL}, v{vA0+3}, s[4:7], 0 offen sc1
        s_mov_b64 exec, -1""")
        self.poll(vT0, None, 0, int(os.environ.get('SLP', 2)))
        a.label(Lw)
        a("s_barrier")
        self.stamp("G1 poll")
        assert XPRE == 8
        self.cs_loads(0)
        for i in range(2):
            self.wdma(sWA, i, i + 1, tag=("wc", i)); self.wdma(sWA, 7 + i, 8 + i, tag=("wc", i))
            self.x_loads(4 * i, 4 * i + 4)

    def unit(self, TL, d, TP, TB, dst, csd, scale, ones, lim, tag, mfma=True):
        a = self.a
        if mfma:
            a(f"v_mfma_f32_32x32x16_bf16 {vr(d,16)}, {vr(TL,4)}, {vr(TB,4)}, 0")
            a(f"v_mfma_f32_32x32x16_bf16 {vr(d,16)}, {vr(TL+4,4)}, {vr(TB+4,4)}, {vr(d,16)}")
        a(f"""v_mov_b32 v{vC}, s{scale}
        v_cmp_gt_u32 vcc, {lim}, v{vA0}
        v_cndmask_b32 v{vC}, 0, v{vC}, vcc
        v_cmp_eq_u32 vcc, s{ones}, v{vA0}
        v_cndmask_b32 v{vC+1}, 0, 1.0, vcc
        v_lshlrev_b32 v{vT2}, 2, v{vA0}""")
        for p in range(8):
            a(f"v_pk_fma_f32 {vr(d+2*p,2)}, {vr(d+2*p,2)}, {vr(vC,2)}, {vr(vC,2)} op_sel:[0,0,1] op_sel_hi:[1,0,1]")
        self.pack16(TP, d)
        a(f"buffer_store_dwordx4 {vr(TP,4)}, v{vL16}, s[4:7], s{dst} offen sc1", tag=tag)
        a(f"buffer_store_dwordx4 {vr(TP+4,4)}, v{vL16}, s[4:7], s{dst} offen offset:1024 sc1", tag=tag)
        for st in (8, 4, 2):
            for p in range(0, st, 2):
                a(f"v_pk_add_f32 {vr(d+p,2)}, {vr(d+p,2)}, {vr(d+p+st,2)}")
        a(f"""v_add_f32 v{vT0}, v{d}, v{d+1}
        v_mov_b32 v{vT1}, v{vT0}
        v_permlane32_swap_b32 v{vT0}, v{vT1}
        v_add_f32 v{vT0}, v{vT0}, v{vT1}""")
        a(f"buffer_store_dword v{vT0}, v{vT2}, s[4:7], s{csd} offen sc1", tag=tag)

    def g2_load(self):
        a = self.a
        a(f"""s_mov_b32 s{sBG}, {F_G2}
        v_and_b32 v{CSR+5}, 15, v0
        v_lshlrev_b32 v{CSR+5}, 2, v{CSR+5}
        s_lshl_b32 s{sBG1}, s{sRB}, 7
        s_add_u32 s{sBG1}, s{sBG1}, {F_XCC}""")
        a(f"buffer_load_dwordx4 {vr(CSR,4)}, v{vL16}, s[4:7], s{sBG} offen sc1", tag="g2")
        a(f"buffer_load_dword v{CSR+4}, v{CSR+5}, s[4:7], s{sBG1} offen sc1", tag="g2")
    def g2_check(self):
        a = self.a
        L = a.newlabel("g2"); Lr = a.newlabel("g2again")
        a.wait(vm="g2")
        a.label(L)
        a(f"""v_xor_b32 v{CSR}, s{sTAG}, v{CSR}
        v_xor_b32 v{CSR+1}, s{sTAG}, v{CSR+1}
        v_xor_b32 v{CSR+2}, s{sTAG}, v{CSR+2}
        v_xor_b32 v{CSR+3}, s{sTAG}, v{CSR+3}
        v_subrev_u32 v{CSR+6}, s{sTAG}, v{CSR+4}
        v_subrev_u32 v{CSR+6}, 1, v{CSR+6}
        v_lshrrev_b32 v{CSR+6}, 4, v{CSR+6}
        v_or3_b32 v{CSR}, v{CSR}, v{CSR+1}, v{CSR+2}
        v_or3_b32 v{CSR}, v{CSR}, v{CSR+3}, v{CSR+6}
        v_cmp_ne_u32 vcc, 0, v{CSR}
        s_cbranch_vccnz {Lr}
        v_cmp_ne_u32 vcc, s{sXCC}, v{CSR+4}
        s_cmp_eq_u64 vcc, 0
        s_cselect_b32 s{sFAST}, 1, 0""")
        def emit():
            a(f"""s_sleep 2
            s_sub_u32 s{sTO}, s{sTO}, 1
            s_cmp_eq_u32 s{sTO}, 0
            s_cbranch_scc1 {self.name}_end""")
            self.g2_load()
            a(f"s_waitcnt vmcnt(0)\ns_branch {L}")
        self.stub(Lr, emit)
    def cs_loads(self, ab):
        a = self.a
        a(f"""s_add_u32 s{sT0}, s{sH}, {16*ab}
        s_mul_i32 s{sT0}, s{sT0}, 3
        s_min_u32 s{sT1}, s{sW}, 2
        s_add_u32 s{sT0}, s{sT0}, s{sT1}
        s_lshl_b32 s{sT0}, s{sT0}, 11
        s_add_u32 s{sT0}, s{sT0}, {CS}
        v_lshrrev_b32 v{vT0}, 5, v0
        v_mul_u32_u24 v{vT0}, {7*128}, v{vT0}
        v_and_b32 v{vT1}, 31, v0
        v_lshl_add_u32 v{vT0}, v{vT1}, 2, v{vT0}""")
        for i in range(7):
            a(f"buffer_load_dword v{CSR+i}, v{vT0}, s[4:7], s{sT0} offen offset:{128*i} sc1", tag="cs")
    def cs_store(self, ab):
        a = self.a
        a.wait(vm="cs")
        a(f"""v_add_f32 v{vT0}, v{CSR}, v{CSR+1}
        v_add_f32 v{vT1}, v{CSR+2}, v{CSR+3}
        v_add_f32 v{vT0}, v{vT0}, v{CSR+4}
        v_add_f32 v{vT1}, v{vT1}, v{CSR+5}
        v_add_f32 v{vT0}, v{vT0}, v{CSR+6}
        v_add_f32 v{vT0}, v{vT0}, v{vT1}
        v_mov_b32 v{vT1}, v{vT0}
        s_min_u32 s{sT1}, s{sW}, 2
        s_lshl_b32 s{sT1}, s{sT1}, 7
        s_add_u32 s{sT1}, s{sT1}, {L_CS + 384*ab}
        v_and_b32 v{vT2}, 31, v0
        v_permlane32_swap_b32 v{vT0}, v{vT1}
        v_add_f32 v{vT0}, v{vT0}, v{vT1}
        v_mul_f32 v{vT0}, {f2u(-1.0/D)}, v{vT0}
        v_lshl_add_u32 v{vT2}, v{vT2}, 2, s{sT1}""")
        a(f"ds_write_b32 v{vT2}, v{vT0}", tag="csw")
    def cs_read(self, ab, mat, dst):
        a = self.a
        def rd(j):
            if j == 0: a(f"v_lshrrev_b32 v{vA0+1}, 5, v0\nv_lshlrev_b32 v{vA0+1}, 4, v{vA0+1}\nv_add_u32 v{vA0+1}, {L_CS}, v{vA0+1}")
            a(f"ds_read_b128 {vr(dst+4*j,4)}, v{vA0+1} offset:{384*ab+128*mat+32*j}", tag=("csr", mat))
        return [(lambda j=j: rd(j)) for j in range(4)]
    def center(self, acc, cs, mat):
        a = self.a
        a.wait(lg=("csr", mat))
        for p in range(8):
            a(f"v_pk_fma_f32 {vr(acc+2*p,2)}, {vr(cs+2*p,2)}, {vr(vSX,2)}, {vr(acc+2*p,2)} op_sel_hi:[1,0,1]")

    def early(self, vR):
        a = self.a; n = self.name
        a(f"""v_bfe_u32 v{vT0}, v0, 2, 2
        v_xor_b32 v{vT0}, v{vT0}, v{vA0+1}
        v_lshlrev_b32 v{vT0}, 4, v{vT0}
        v_lshl_add_u32 v{vR}, v{vA0}, 6, v{vT0}
        v_xor_b32 v{vR+1}, 32, v{vR}""")
        if "notlb" not in OPT:
            a(f"""v_min_u32 v{vT2}, 8, v0
            v_lshlrev_b32 v{vT2}, 21, v{vT2}
            v_add_u32 v{vT2}, 0x1f0000, v{vT2}
            buffer_load_dword v{vDUM}, v{vT2}, s[4:7], 0 offen""")
        a(f"""s_lshl_b32 s{sT0}, s{sH}, 16
        s_lshl_b32 s{sT1}, s{sRB}, 12
        s_add_u32 s{sKVPW}, s{sT0}, s{sT1}
        s_add_u32 s{sKVPW}, s{sKVPW}, {KVP}
        s_add_u32 s{sKVPR}, s{sKVPW}, s{sM0W}
        s_lshl_b32 s{sT0}, s{sH}, 18
        s_lshl_b32 s{sT1}, s{sRB}, 14
        s_add_u32 s{sKVO}, s{sT0}, s{sT1}
        s_lshl_b32 s{sT1}, s{sW}, 12
        s_add_u32 s{sKVO}, s{sKVO}, s{sT1}
        s_add_u32 s{sKVO}, s{sKVO}, {KV}
        s_lshl_b32 s{sT0}, s{sH}, 1
        s_lshr_b32 s{sT1}, s{sW}, 1
        s_add_u32 s{sT0}, s{sT0}, s{sT1}
        s_lshl_b32 s{sT0}, s{sT0}, 7
        s_add_u32 s{sFKVPR}, s{sT0}, {F_KVP}
        s_lshl_b32 s{sT0}, s{sRB}, 1
        s_and_b32 s{sT1}, s{sW}, 1
        s_add_u32 s{sT0}, s{sT0}, s{sT1}
        s_lshl_b32 s{sT0}, s{sT0}, 2
        s_add_u32 s{sFKVPW}, s{sFKVPR}, s{sT0}
        s_lshl_b32 s{sT0}, s{sH}, 2
        s_add_u32 s{sT0}, s{sT0}, s{sW}
        s_lshl_b32 s{sT0}, s{sT0}, 7
        s_add_u32 s{sFKVR}, s{sT0}, {F_KV}
        s_lshl_b32 s{sT0}, s{sRB}, 2
        s_add_u32 s{sFKVW}, s{sFKVR}, s{sT0}
        s_waitcnt lgkmcnt(0)
        s_mul_i32 s{sTAG}, s{sTAG}, 0x9E3779C1
        s_add_u32 s{sTAG}, s{sTAG}, 0x7F4A7C20""")

    def x0_publish(self, vR, sl):
        a = self.a
        L = a.newlabel("x0skip")
        a(f"v_add_u32 v{vT0}, s{sl}, v{vR}\nv_add_u32 v{vT1}, s{sl}, v{vR+1}")
        a.wait(vm="x0")
        a(f"""ds_read_b128 {vr(EP,4)}, v{vT0}
        ds_read_b128 {vr(EP+4,4)}, v{vT1}
        s_waitcnt lgkmcnt(0)
        v_permlane32_swap_b32 v{EP}, v{EP+2}
        v_permlane32_swap_b32 v{EP+1}, v{EP+3}
        v_permlane32_swap_b32 v{EP+4}, v{EP+6}
        v_permlane32_swap_b32 v{EP+5}, v{EP+7}""")
        for p in range(8):
            a(f"v_lshlrev_b32 v{XRES+2*p}, 16, v{EP+p}\nv_and_b32 v{XRES+2*p+1}, 0xffff0000, v{EP+p}")
        a(f"s_cmp_eq_u32 s{sACT}, 1\ns_cselect_b32 s6, {WS_BYTES}, 0")
        self.publish_x(0, direct=True)
        a(f"s_mov_b32 s6, {WS_BYTES}")
    def addr_A(self):
        a = self.a
        a(f"""v_and_b32 v{vT0}, 31, v0
        v_lshrrev_b32 v{vT1}, 5, v0
        s_lshl_b32 s{sT0}, s{sW}, 5
        v_add_u32 v{vT2}, s{sT0}, v{vT0}
        v_and_b32 v{vT3}, 9, v0
        v_bfe_u32 v{vA0}, v0, 1, 1
        v_lshl_or_b32 v{vT3}, v{vA0}, 2, v{vT3}
        v_bfe_u32 v{vA0}, v0, 2, 1
        v_lshl_or_b32 v{vT3}, v{vA0}, 1, v{vT3}
        v_xor_b32 v{vT3}, v{vT3}, v{vT1}
        v_lshlrev_b32 v{vT3}, 3, v{vT3}
        v_lshl_add_u32 v{vT3}, v{vT2}, 7, v{vT3}
        v_add_u32 v{ADR}, {L_PHI}, v{vT3}
        v_bfe_u32 v{vT3}, v0, 1, 3
        v_xor_b32 v{vT3}, v{vT3}, v{vT1}
        v_lshlrev_b32 v{vT3}, 3, v{vT3}
        v_lshl_add_u32 v{vT3}, v{vT2}, 6, v{vT3}
        v_add_u32 v{ADR+1}, {L_VV}, v{vT3}""")
        a(f"""v_bfe_u32 v{vT0}, v0, 2, 2
        v_lshrrev_b32 v{vT1}, 4, v0
        v_lshl_add_u32 v{vT2}, v{vT1}, 3, v{vT0}
        v_bfe_u32 v{vT3}, v0, 4, 1
        v_lshlrev_b32 v{vT3}, 3, v{vT3}
        v_bfe_u32 v{vA0}, v0, 3, 1
        v_lshl_or_b32 v{vT3}, v{vA0}, 2, v{vT3}
        v_bfe_u32 v{vA0}, v0, 2, 1
        v_or_b32 v{vT3}, v{vT3}, v{vA0}
        v_and_b32 v{vA0}, 3, v0
        s_lshr_b32 s{sT0}, s{sW}, 1
        s_lshl_b32 s{sT0}, s{sT0}, 3
        v_or_b32 v{vA0}, s{sT0}, v{vA0}
        v_xor_b32 v{vT3}, v{vT3}, v{vA0}
        v_lshlrev_b32 v{vT3}, 3, v{vT3}
        v_lshl_add_u32 v{vT3}, v{vT2}, 7, v{vT3}
        v_add_u32 v{ADR+2}, {L_PHI}, v{vT3}
        v_xor_b32 v{ADR+3}, 16, v{ADR+2}
        v_add_u32 v{ADR+3}, 512, v{ADR+3}
        v_xor_b32 v{ADR+4}, 32, v{ADR+2}
        v_xor_b32 v{ADR+5}, 32, v{ADR+3}
        v_bfe_u32 v{vT3}, v0, 4, 1
        v_lshlrev_b32 v{vT3}, 2, v{vT3}
        v_bfe_u32 v{vA0}, v0, 3, 1
        v_or_b32 v{vT3}, v{vT3}, v{vA0}
        v_and_b32 v{vA0}, 3, v0
        s_and_b32 s{sT0}, s{sW}, 1
        s_lshl_b32 s{sT0}, s{sT0}, 2
        v_or_b32 v{vA0}, s{sT0}, v{vA0}
        v_xor_b32 v{vT3}, v{vT3}, v{vA0}
        v_lshlrev_b32 v{vT3}, 3, v{vT3}
        v_lshl_add_u32 v{vT3}, v{vT2}, 6, v{vT3}
        v_add_u32 v{ADR+6}, {L_VV}, v{vT3}
        v_xor_b32 v{ADR+7}, 16, v{ADR+6}
        v_add_u32 v{ADR+7}, 256, v{ADR+7}""")

    def addr_B(self):
        a = self.a
        a(f"""v_and_b32 v{vT0}, 31, v0
        v_lshrrev_b32 v{vT1}, 5, v0
        s_lshl_b32 s{sT0}, s{sW}, 11
        s_add_u32 s{sT0}, s{sT0}, {L_VT}
        v_bfe_u32 v{vT3}, v0, 1, 3
        v_xor_b32 v{vT3}, v{vT3}, v{vT1}
        v_lshlrev_b32 v{vT3}, 3, v{vT3}
        v_lshl_add_u32 v{vT3}, v{vT0}, 6, v{vT3}
        v_add_u32 v{ADR}, s{sT0}, v{vT3}
        v_bfe_u32 v{vT0}, v0, 2, 2
        v_lshl_add_u32 v{vT2}, v{vT1}, 3, v{vT0}
        v_bfe_u32 v{vT3}, v0, 3, 1
        v_lshl_or_b32 v{vT3}, v{vT1}, 2, v{vT3}
        v_and_b32 v{vA0}, 3, v0
        v_bfe_u32 v{vT0}, v0, 4, 1
        v_lshl_or_b32 v{vA0}, v{vT0}, 2, v{vA0}
        v_xor_b32 v{vT3}, v{vT3}, v{vA0}
        v_lshlrev_b32 v{vT3}, 3, v{vT3}
        v_lshl_add_u32 v{vT3}, v{vT2}, 6, v{vT3}
        v_add_u32 v{ADR+1}, s{sT0}, v{vT3}
        v_xor_b32 v{ADR+2}, 16, v{ADR+1}
        v_add_u32 v{ADR+2}, 256, v{ADR+2}""")

    def gemm_kv(self, ab, bg=None, first=False):
        a = self.a
        bg = self.ss_loads() + list(bg or [])
        lbg = self.cs_read(ab, 0, EP) + self.cs_read(ab, 1, EM)
        per = -(-len(bg) // XPRE)
        def chunk(ks):
            if first and ks % 4 == 0 and ks < 28:
                if ks == 4: self.cs_store(0); a.wait(lg="csw")
                a.wait(vm=("wc", ks // 4)); a("s_barrier")
        chunk(0)
        def rd(ks):
            s = RING + 8 * (ks % 3)
            return (f"ds_read_b128 {vr(s,4)}, v{vL16} offset:{L_W+1024*ks}", f"ds_read_b128 {vr(s+4,4)}, v{vL16} offset:{L_W+28672+1024*ks}")
        for ks in range(2):
            for l in rd(ks): a(l, tag=("w", ks))
        for ks in range(28):
            s = RING + 8 * (ks % 3); x = X + 4 * ks
            a.wait(vm=("x", ks), lg=("w", ks))
            ck = vr(ACCK, 16) if ks else "0"; cv = vr(ACCV, 16) if ks else "0"
            a(f"v_mfma_f32_32x32x16_bf16 {vr(ACCK,16)}, {vr(s,4)}, {vr(x,4)}, {ck}")
            if first and ks + 8 < 28 and ks % 4 < 2:
                i = (ks + 8) // 4
                self.wdma(sWA, i + 7 * (ks % 4), i + 7 * (ks % 4) + 1, tag=("wc", i))
            if ks + XPRE < 28: self.x_loads(ks + XPRE, ks + XPRE + 1)
            elif bg: bg.pop(0)()
            chunk(ks + 2)
            if ks + 2 < 28: a(rd(ks + 2)[0], tag=("w", ks + 2))
            a(f"v_mfma_f32_32x32x16_bf16 {vr(ACCV,16)}, {vr(s+4,4)}, {vr(x,4)}, {cv}")
            if ks + 2 < 28: a(rd(ks + 2)[1], tag=("w", ks + 2))
            if ks + XPRE >= 28:
                for t in range(per - 1):
                    if bg: bg.pop(0)()
            if ks >= 18 and lbg: lbg.pop(0)()
        assert not bg and not lbg
    def gemm_q(self, ab, acc, hook=None, hook_at=22, fill=None):
        a = self.a
        lbg = self.cs_read(ab, 2, EP)
        base = L_W + 57344 - 32768
        a(f"v_add_u32 v{vA0}, 32768, v{vL16}")
        def rd(ks): return f"ds_read_b128 {vr(RING+4*(ks%4),4)}, v{vA0} offset:{base+1024*ks}"
        for ks in range(3): a(rd(ks), tag=("wq", ks))
        for ks in range(28):
            a.wait(lg=("wq", ks))
            c = vr(acc, 16) if ks else "0"
            a(f"v_mfma_f32_32x32x16_bf16 {vr(acc,16)}, {vr(RING+4*(ks%4),4)}, {vr(X+4*ks,4)}, {c}")
            if ks + 3 < 28: a(rd(ks + 3), tag=("wq", ks + 3))
            if fill: fill(ks)
            if ks >= 16 and lbg: lbg.pop(0)()
            if hook and ks == hook_at: hook()
    def stats(self):
        a = self.a
        a.wait(vm="ss")
        a(f"""v_add_f32 v{vT0}, v{ACCS}, v{ACCS+1}
        v_add_f32 v{vT1}, v{ACCS+2}, v{ACCS+3}
        v_add_f32 v{vT0}, v{vT0}, v{ACCS+4}
        v_add_f32 v{vT1}, v{vT1}, v{ACCS+5}
        v_add_f32 v{vT0}, v{vT0}, v{ACCS+6}
        v_add_f32 v{vT0}, v{vT0}, v{vT1}
        v_mov_b32 v{vT1}, v{vT0}
        v_mov_b32 v{vT2}, v{ACCK+12}
        v_mov_b32 v{vSX}, v{ACCK+12}
        v_permlane32_swap_b32 v{vT0}, v{vT1}
        v_permlane32_swap_b32 v{vT2}, v{vSX}
        v_add_f32 v{vT0}, v{vT0}, v{vT1}
        v_mul_f32 v{vT3}, {f2u(1.0/D)}, v{vSX}
        v_mul_f32 v{vT0}, {f2u(1.0/D)}, v{vT0}
        v_fma_f32 v{vT0}, -v{vT3}, v{vT3}, v{vT0}
        v_max_f32 v{vT0}, 0, v{vT0}
        v_add_f32 v{vT0}, {f2u(1e-5)}, v{vT0}
        v_rsq_f32 v{vRS}, v{vT0}""")
        self.center(ACCV, EM, 1)
        self.center(ACCK, EP, 0)
    def scale16(self, acc, sreg):
        for p in range(8):
            self.a(f"v_pk_mul_f32 {vr(acc+2*p,2)}, {vr(acc+2*p,2)}, {vr(sreg,2)} op_sel_hi:[1,0]")
    def pack16(self, dst, src):
        for p in range(8): self.a(f"v_cvt_pk_bf16_f32 v{dst+p}, v{src+2*p}, v{src+2*p+1}")
    def tree3(self, op, dst, regs):
        a = self.a
        a(f"{op} v{dst}, v{regs[0]}, v{regs[1]}, v{regs[2]}")
        i = 3
        while i + 1 < len(regs):
            a(f"{op} v{dst}, v{dst}, v{regs[i]}, v{regs[i+1]}"); i += 2
        if i < len(regs): a(f"{op} v{dst}, v{dst}, v{regs[i]}, v{regs[i]}")
    def feature_map(self, acc, outp, outm):
        a = self.a
        self.upper()
        for r in range(12, 16): a(f"v_mov_b32 v{acc+r}, v{acc}")
        self.full()
        regs = list(range(acc, acc + 16))
        self.tree3("v_max3_f32", vT0, regs)
        self.tree3("v_min3_f32", vT2, regs)
        a(f"""v_mov_b32 v{vT1}, v{vT0}
        v_mov_b32 v{vT3}, v{vT2}
        v_permlane32_swap_b32 v{vT0}, v{vT1}
        v_permlane32_swap_b32 v{vT2}, v{vT3}
        v_max_f32 v{vT0}, v{vT0}, v{vT1}
        v_min_f32 v{vT2}, v{vT2}, v{vT3}
        v_mul_f32 v{vC}, -v{vT0}, v{vRS}
        v_mul_f32 v{vC+1}, v{vT2}, v{vRS}""")
        for p in range(8):
            a(f"v_pk_fma_f32 {vr(EP+2*p,2)}, {vr(acc+2*p,2)}, {vr(vRS,2)}, {vr(vC,2)} op_sel_hi:[1,0,0]")
            a(f"v_pk_fma_f32 {vr(EM+2*p,2)}, {vr(acc+2*p,2)}, {vr(vRS,2)}, {vr(vC,2)} op_sel:[0,0,1] op_sel_hi:[1,0,1] neg_lo:[1,0,0] neg_hi:[1,0,0]")
        for r in range(16):
            a(f"v_exp_f32 v{EP+r}, v{EP+r}")
            a(f"v_exp_f32 v{EM+r}, v{EM+r}")
        self.upper()
        for r in range(12, 16): a(f"v_mov_b32 v{EP+r}, 0\nv_mov_b32 v{EM+r}, 0")
        self.full()
        a(f"v_pk_add_f32 {vr(vT0,2)}, {vr(EP,2)}, {vr(EP+2,2)}")
        a(f"v_pk_add_f32 {vr(vT2,2)}, {vr(EM,2)}, {vr(EM+2,2)}")
        for p in range(2, 8):
            a(f"v_pk_add_f32 {vr(vT0,2)}, {vr(vT0,2)}, {vr(EP+2*p,2)}")
            a(f"v_pk_add_f32 {vr(vT2,2)}, {vr(vT2,2)}, {vr(EM+2*p,2)}")
        a(f"""v_add_f32 v{vT0}, v{vT0}, v{vT1}
        v_add_f32 v{vT2}, v{vT2}, v{vT3}
        v_mov_b32 v{vT1}, v{vT0}
        v_mov_b32 v{vT3}, v{vT2}
        v_permlane32_swap_b32 v{vT0}, v{vT1}
        v_permlane32_swap_b32 v{vT2}, v{vT3}
        v_add_f32 v{vT0}, v{vT0}, v{vT1}
        v_add_f32 v{vT2}, v{vT2}, v{vT3}
        v_rcp_f32 v{vC}, v{vT0}
        v_rcp_f32 v{vC+1}, v{vT2}""")
        for p in range(8):
            a(f"v_pk_mul_f32 {vr(EP+2*p,2)}, {vr(EP+2*p,2)}, {vr(vC,2)} op_sel_hi:[1,0]")
            a(f"v_pk_mul_f32 {vr(EM+2*p,2)}, {vr(EM+2*p,2)}, {vr(vC,2)} op_sel:[0,1] op_sel_hi:[1,1]")
        self.pack16(outp, EP)
        self.pack16(outm, EM)
    def bcast_up_rcp(self, src, add=None):
        a = self.a
        a(f"""v_mov_b32 v{vT0}, v{src}
        v_mov_b32 v{vT1}, v{src}
        v_permlane32_swap_b32 v{vT0}, v{vT1}""")
        if add is not None: a(f"v_add_f32 v{vT1}, {f2u(add)}, v{vT1}")
        a(f"v_rcp_f32 v{vC}, v{vT1}")
    def publish_o(self, acc, layer):
        a = self.a
        self.scale16(acc, vC)
        self.pack16(EP, acc)
        self.dual([f"buffer_store_dwordx4 {vr(EP,4)}, v{vL16}, s[4:7], s{sOWR} offen",
                   f"buffer_store_dwordx4 {vr(EP+4,4)}, v{vL16}, s[4:7], s{sOWR} offen offset:1024"], tag="ost")
        self.flag_prep(layer)

    def layer_A(self, it):
        a = self.a; layer = 2 * it + 1
        if it:
            a(f"""s_add_u32 s{sKVPW}, s{sKVPW}, 0x100000
            s_add_u32 s{sKVPR}, s{sKVPR}, 0x100000
            s_add_u32 s{sFKVPW}, s{sFKVPW}, 4096
            s_add_u32 s{sFKVPR}, s{sFKVPR}, 4096""")
        lateq = it == 0 or bool(self.wa_left)
        bg = [(lambda i=i: self.wdma(sWA, i, i + 1, tag="wq")) for i in range(14, 21)] if lateq else []
        if it == 0: bg = [self.g2_load] + bg
        self.gemm_kv(0, bg, it == 0)
        self.stamp("A gemm kv")
        self.stats()
        if it == 0:
            self.g2_check()
            self.cs_loads(1)
            a.background([(lambda k=k: self.wo_load(sWOA, 0, k, k + 1)) for k in range(12)], 12)
        self.scale16(ACCV, vRS)
        self.upper(); a(f"v_mov_b32 v{ACCV+12}, 1.0"); self.full()
        self.pack16(RING, ACCV)
        for j in range(4):
            if j: a(f"v_xor_b32 v{vA0}, {16*j}, v{ADR+1}")
            a(f"ds_write_b64 v{vA0 if j else ADR+1}, {vr(RING+2*j,2)}", tag="stage")
        self.feature_map(ACCK, RING, RING + 8)
        for sgn in range(2):
            for j in range(4):
                c = 64 * sgn + 16 * j
                if c: a(f"v_xor_b32 v{vA0+(j&1)}, {c}, v{ADR}")
                a(f"ds_write_b64 v{vA0+(j&1) if c else ADR}, {vr(RING+8*sgn+2*j,2)}", tag="stage")
        a.bg_flush()
        if it == 0: self.cs_store(1); a.wait(lg="csw")
        a.wait(lg="stage")
        a.wait(vm="wq")
        a("s_barrier")
        self.stamp("A phi_k")
        def rds(k):
            b = EP + 12 * (k % 2)
            for t in range(2):
                for r in range(2):
                    a(f"ds_read_b64_tr_b16 {vr(b+4*t+2*r,2)}, v{ADR+2+2*t+r} offset:{4096*k}", tag=("kv", k))
            for r in range(2):
                a(f"ds_read_b64_tr_b16 {vr(b+8+2*r,2)}, v{ADR+6+r} offset:{2048*k}", tag=("kv", k))
        rds(0); rds(1)
        for k in range(4):
            b = EP + 12 * (k % 2)
            a.wait(lg=("kv", k))
            for t in range(2):
                c = vr(ACCS + 4 * t, 4) if k else "0"
                a(f"v_mfma_f32_16x16x32_bf16 {vr(ACCS+4*t,4)}, {vr(b+4*t,4)}, {vr(b+8,4)}, {c}")
            if k + 2 < 4: rds(k + 2)
        a(f"""v_lshrrev_b32 v{vT0}, 5, v0
        v_bfe_u32 v{vT1}, v0, 4, 1
        v_and_b32 v{vT2}, 15, v0
        v_lshl_or_b32 v{vT2}, v{vT1}, 5, v{vT2}
        v_lshlrev_b32 v{vT2}, 4, v{vT2}
        v_lshl_or_b32 v{vT2}, v{vT0}, 10, v{vT2}
        s_lshr_b32 s{sT0}, s{sW}, 1
        s_lshl_b32 s{sT0}, s{sT0}, 11
        s_and_b32 s{sT1}, s{sW}, 1
        s_lshl_b32 s{sT1}, s{sT1}, 8
        s_add_u32 s{sT0}, s{sT0}, s{sT1}
        s_add_u32 s{sT0}, s{sT0}, s{sKVPW}""")
        self.flag_prep(0)
        for p in range(4): a(f"v_cvt_pk_bf16_f32 v{EM+8+p}, v{ACCS+2*p}, v{ACCS+2*p+1}")
        a(f"v_permlane32_swap_b32 v{EM+8}, v{EM+10}\nv_permlane32_swap_b32 v{EM+9}, v{EM+11}")
        a(f"buffer_store_dwordx4 {vr(EM+8,4)}, v{vT2}, s[4:7], s{sT0} offen sc1", tag="kvp")
        self.stamp("A kv stored")
        def hook():
            a.wait(vm="kvp")
            self.flag(sFKVPW, False)
        def fill(ks):
            if it == 0 and ks < 20: self.wo_load(sWOA, 0, 12 + ks, 13 + ks)
        self.gemm_q(0, ACCK, hook, 22, fill)
        a.wait(lg=("csr", 2))
        a("s_barrier")
        self.stamp("A q gemm+flag")
        self.center(ACCK, EP, 2)
        if "notouch" not in OPT: self.touch_ox(RING)
        a.background([(lambda i=i: self.wdma(sWB, i, i + 1)) for i in range(8)], 10)
        self.feature_map(ACCK, PHQ, PHQ + 8)
        a.bg_flush()
        self.stamp("A phi_q")
        a(f"""v_and_b32 v{vT0}, 31, v0
        v_lshlrev_b32 v{vT0}, 2, v{vT0}""")
        self.poll(vT0, sFKVPR, 0)
        self.stamp("A kv poll")
        for r in range(16):
            a(f"s_xor_b32 s{sT1}, s{sKVPR}, {4096*r}")
            a(f"buffer_load_dwordx4 {vr(X+4*r,4)}, v{vL16}, s[4:7], s{sT1} offen sc1", tag=("p", r))
        a.background([(lambda i=i: self.wdma(sWB, i, i + 1)) for i in range(8, 14)], 24)
        for r in range(16):
            a.wait(vm=("p", r))
            for p in range(4):
                dst = (ACCV + 2 * p) if r == 0 else (ACCV + 8 + 2 * (p & 1))
                a(f"v_lshlrev_b32 v{dst}, 16, v{X+4*r+p}\nv_and_b32 v{dst+1}, 0xffff0000, v{X+4*r+p}")
                if r: a(f"v_pk_add_f32 {vr(ACCV+2*p,2)}, {vr(ACCV+2*p,2)}, {vr(dst,2)}")
        a.bg_flush()
        for p in range(4): a(f"v_cvt_pk_bf16_f32 v{EP+p}, v{ACCV+2*p}, v{ACCV+2*p+1}")
        a(f"""s_add_u32 s{sT0}, s{sM0W}, {L_KVS}
        v_add_u32 v{vA0}, s{sT0}, v{vL16}
        v_add_u32 v{vA0+1}, {L_KVS}, v{vL16}
        ds_write_b128 v{vA0}, {vr(EP,4)}
        s_waitcnt lgkmcnt(0)
        s_barrier""")
        self.stamp("A kv reduced")
        for k in range(4): a(f"ds_read_b128 {vr(EM+4*k,4)}, v{vA0+1} offset:{1024*k}", tag=("kvs", k))
        for k in range(4):
            a.wait(lg=("kvs", k))
            c = vr(ACCK, 16) if k else "0"
            a(f"v_mfma_f32_32x32x16_bf16 {vr(ACCK,16)}, {vr(EM+4*k,4)}, {vr(PHQ+4*k,4)}, {c}")
        self.bcast_up_rcp(ACCK + 12, 1e-6)
        self.publish_o(ACCK, layer)
        a.wait(vm="ost")
        self.flag(sFOW, True)
        self.stamp("A o flag")
        self.wo_phase(layer, 0, [(lambda i=i: self.wdma(sWB, i, i + 1)) for i in range(14, 21)], self.addr_B)

    def wo_phase(self, layer, abase, background=(), after=None):
        a = self.a
        a(f"v_and_b32 v{vT0}, 3, v0\nv_lshlrev_b32 v{vT0}, 2, v{vT0}")
        a(f"s_lshl_b32 s{sT2}, s{sW}, 13\ns_add_u32 s{sT2}, s{sT2}, {L_OST}")
        a(f"v_add_u32 v{vA0}, {L_OST}, v{vL16}")
        self.poll(vT0, sFOR, layer)
        self.stamp("o poll")
        for i in range(8):
            if i % 4 == 0:
                a(f"s_add_u32 m0, s{sT2}, {1024*i}\ns_add_u32 s{sT1}, s{sORD}, {1024*i}")
            a(f"buffer_load_dwordx4 v{vL16}, s[4:7], s{sT1} offen offset:{1024*(i%4)} sc1 lds", tag="odma")
        a.wait(vm="odma")
        a("s_barrier")
        self.stamp("o landed")
        Lskip = a.newlabel("woskip"); Ljoin = a.newlabel("wojoin")
        a(f"s_cmp_eq_u32 s{sACT}, 0\ns_cbranch_scc1 {Lskip}")
        def rd(k): a(f"ds_read_b128 {vr(RING+4*(k%4),4)}, v{vA0} offset:{1024*k}", tag=("o", k))
        for k in range(3): rd(k)
        a.background(background, 2)
        for k in range(32):
            a.wait(lg=("o", k))
            a(f"v_mfma_f32_32x32x16_bf16 {vr(XRES,16)}, {ar(abase+4*k,4)}, {vr(RING+4*(k%4),4)}, {vr(XRES,16)}")
            if k + 3 < 32: rd(k + 3)
        assert not a.bg
        if layer < 4:
            self.pack16(EP, XRES)
            self.publish_x(layer)
            a("s_waitcnt vmcnt(0)")
            self.flag(sFXW, True)
            a.label(Ljoin)
            def emit():
                for f in background: f()
                a(f"s_waitcnt vmcnt(0)\ns_branch {Ljoin}")
            self.stub(Lskip, emit)
            a(f"v_and_b32 v{vT0}, 15, v0\nv_min_u32 v{vT0}, 13, v{vT0}\nv_lshlrev_b32 v{vT0}, 2, v{vT0}")
            a("s_barrier")
            self.stamp("x flag")
            self.poll(vT0, sFXR, layer)
            self.stamp("x poll")
            self.x_loads(0, XPRE)
            if after: after()
        else:
            a(f"""v_and_b32 v{vT0}, 31, v0
            v_mul_u32_u24 v{vT0}, 896, v{vT0}
            v_lshrrev_b32 v{vT1}, 5, v0
            v_lshl_add_u32 v{vT0}, v{vT1}, 4, v{vT0}""")
            self.pack16(EP, XRES)
            a(f"""v_permlane32_swap_b32 v{EP}, v{EP+2}
            v_permlane32_swap_b32 v{EP+1}, v{EP+3}
            v_permlane32_swap_b32 v{EP+4}, v{EP+6}
            v_permlane32_swap_b32 v{EP+5}, v{EP+7}
            buffer_store_dwordx4 {vr(EP,4)}, v{vT0}, s[8:11], s{sOUT} offen
            buffer_store_dwordx4 {vr(EP+4,4)}, v{vT0}, s[8:11], s{sOUT} offen offset:32""")
            a.label(Lskip)

    def set_negmax(self, src):
        a = self.a; q = QF + 24
        a(f"""v_xor_b32 v{vT0}, 0x80000000, v{src}
        v_and_b32 v{vT1}, 0xffff0000, v{vT0}
        v_sub_f32 v{vT0}, v{vT0}, v{vT1}
        v_and_b32 v{vT2}, 0xffff0000, v{vT0}
        v_sub_f32 v{vT0}, v{vT0}, v{vT2}
        v_lshrrev_b32 v{vT1}, 16, v{vT1}""")
        self.upper()
        a(f"v_or_b32 v{q+6}, v{vT1}, v{vT2}\nv_lshrrev_b32 v{q+7}, 16, v{vT0}")
        self.full()
    def share_addr(self, j):
        a = self.a
        if j == 3:
            a(f"""s_lshl_b32 s{sT0}, s{sW}, 11
            s_add_u32 s{sT0}, s{sT0}, {L_QS}
            v_add_u32 v{vQA+3}, s{sT0}, v{vL16}
            s_mul_i32 s{sT0}, s{sW}, 12288
            s_add_u32 s{sT0}, s{sT0}, {L_ORED}
            v_add_u32 v{ADR+6}, s{sT0}, v{vL16}""")
            return
        a(f"""s_add_u32 s{sT0}, s{sW}, {j+1}
        s_and_b32 s{sT0}, s{sT0}, 3
        s_lshl_b32 s{sT1}, s{sT0}, 11
        s_add_u32 s{sT1}, s{sT1}, {L_QS}
        v_add_u32 v{vQA+j}, s{sT1}, v{vL16}
        s_mul_i32 s{sT0}, s{sT0}, 12288
        s_add_u32 s{sT0}, s{sT0}, {L_ORED + 4096*j}
        v_add_u32 v{ADR+3+j}, s{sT0}, v{vL16}""")
    def share_q(self):
        a = self.a; q = QF + 24
        a(f"""ds_write_b128 v{vQA+3}, {vr(q,4)}
        ds_write_b128 v{vQA+3}, {vr(q+4,4)} offset:1024
        s_waitcnt lgkmcnt(0)
        s_barrier""")
        for j in range(3):
            a(f"ds_read_b128 {vr(QF+8*j,4)}, v{vQA+j}", tag=("q", j))
            a(f"ds_read_b128 {vr(QF+8*j+4,4)}, v{vQA+j} offset:1024", tag=("q", j))
    def kv_load1(self, i, f):
        a = self.a; b = KVB[i % 4]
        if "nokv" in OPT and i > 3: return
        if "samekv" in OPT:
            a(f"buffer_load_dwordx4 {vr(b+4*f,4)}, v{vL16}, s[4:7], s{sKVO} offen offset:{1024*f}", tag=("K" if f < 2 else "V", i))
            return
        if f == 0: a(f"s_xor_b32 s{sKT}, s{sKVO}, {i << 14}")
        a(f"buffer_load_dwordx4 {vr(b+4*f,4)}, v{vL16}, s[4:7], s{sKT} offen offset:{1024*f} sc1", tag=("K" if f < 2 else "V", i))

    def layer_B(self, it):
        a = self.a; layer = 2 * it + 2
        KF = KVB[0]; VF = KF + 8
        self.gemm_kv(1)
        self.stamp("B gemm kv")
        self.stats()
        self.scale16(ACCV, vRS)
        self.upper(); a(f"v_mov_b32 v{ACCV+12}, 1.0"); self.full()
        self.pack16(EP, ACCV)
        for j in range(4):
            if j: a(f"v_xor_b32 v{vA0}, {16*j}, v{ADR}")
            a(f"ds_write_b64 v{vA0 if j else ADR}, {vr(EP+2*j,2)}", tag="vt")
        self.scale16(ACCK, vRS)
        a.wait(lg="vt")
        for f in range(2):
            for r in range(2):
                a(f"ds_read_b64_tr_b16 {vr(VF+4*f+2*r,2)}, v{ADR+1+r} offset:{1024*f}", tag="vtr")
        self.upper()
        a(f"v_mov_b32 v{ACCK+12}, 1.0\nv_mov_b32 v{ACCK+13}, 1.0\nv_mov_b32 v{ACCK+14}, 1.0")
        self.full()
        self.pack16(KF, ACCK)
        if it: a(f"s_add_u32 s{sKVO}, s{sKVO}, 0x400000\ns_add_u32 s{sFKVW}, s{sFKVW}, 8192\ns_add_u32 s{sFKVR}, s{sFKVR}, 8192")
        a.wait(lg="vtr")
        for f in (2, 3, 0, 1):
            a(f"buffer_store_dwordx4 {vr(KF+4*f,4)}, v{vL16}, s[4:7], s{sKVO} offen offset:{1024*f} sc1", tag="kvst")
        self.flag_prep(0)
        self.stamp("B kv stored")
        def hook():
            a.wait(vm="kvst")
            self.flag(sFKVW, False)
        def fill(ks):
            if it == 0 and ks % 2 == 1 and ks // 2 < self.wob_done: self.wo_load(sWOB, 128, ks // 2, ks // 2 + 1, tag="bg")
            if ks < 4: self.share_addr(ks)
            if ks == 4: a(f"v_and_b32 v{vPO}, 15, v0\nv_lshlrev_b32 v{vPO}, 2, v{vPO}\nv_mov_b32 v{vIDX}, 0xdddddddd")
            if 9 <= ks <= 24:
                for r in range(4): a(f"v_mov_b32 v{X+4*(ks-1)+r}, 0")
        self.gemm_q(1, ACCK, hook, 22, fill)
        self.stamp("B q gemm+flag")
        q = QF + 24
        self.center(ACCK, EP, 2)
        self.scale16(ACCK, vRS)
        self.pack16(q, ACCK)
        a(f"s_mov_b32 s{sRETRY}, 0")
        a(f"v_mfma_f32_32x32x16_bf16 {vr(ACCV,16)}, {vr(KF,4)}, {vr(q,4)}, 0")
        a(f"v_mfma_f32_32x32x16_bf16 {vr(ACCV,16)}, {vr(KF+4,4)}, {vr(q+4,4)}, {vr(ACCV,16)}")
        self.tree3("v_max3_f32", vM, list(range(ACCV, ACCV + 16)))
        a(f"""v_mov_b32 v{vT2}, v{vM}
        v_permlane32_swap_b32 v{vM}, v{vT2}
        v_max_f32 v{vM}, v{vM}, v{vT2}""")
        Lre = a.newlabel("attn")
        a.label(Lre)
        self.set_negmax(vM)
        self.share_q()
        a(f"buffer_load_dword v{vFL}, v{vPO}, s[4:7], s{sFKVR} offen sc1", tag="apoll")
        self.stamp("B q shared")
        self.attention(it)
        self.stamp("B attention")
        self.finish_attention(layer, Lre)
        a.wait(vm="ost")
        self.flag(sFOW, True)
        self.stamp("B o flag")
        self.wo_phase(layer, 128, (), self.addr_A)

    def attention(self, it):
        a = self.a
        def qk(n, part):
            i, j = divmod(n, 4); s = SB[n % 3]; k = KVB[i % 4] + 4 * part
            if part == 0:
                if j == 0 and i: a.wait(vm=("K", i))
                if i == 0 and j < 3: a.wait(lg=("q", j))
            c = vr(s, 16) if part else "0"
            a(f"v_mfma_f32_32x32x16_bf16 {vr(s,16)}, {vr(k,4)}, {vr(QF+8*j+4*part,4)}, {c}")
        def pv(n, part):
            i, j = divmod(n, 4); s = SB[n % 3] + 8 * part; v = KVB[i % 4] + 8 + 4 * part
            if part == 0 and j == 0 and i: a.wait(vm=("V", i))
            a(f"v_smfmac_f32_32x32x32_bf16 {vr(OA+16*j,16)}, {vr(v,4)}, {vr(s,8)}, v{vIDX}")
        def ex(n, g):
            s = SB[n % 3] + 4 * g
            for r in range(4): a(f"v_exp_f32 v{s+r}, v{s+r}")
        def owrite(j, qq):
            a(f"ds_write_b128 v{ADR+3+j}, {vr(OA+16*j+4*qq,4)} offset:{1024*qq}", tag="ored")
        sched = {}
        if it == 0 and "nobg" not in OPT:
            wob = [(lambda k=k: self.wo_load(sWOB, 128, k, k + 1, tag="bg")) for k in range(self.wob_done, 32)]
            wa = [(lambda i=i: self.wdma(sWA, i, i + 1, tag="bg")) for i in range(21)]
            def spread(items, n0, n1):
                for t, f in enumerate(items):
                    sched.setdefault(n0 + (t * (n1 - n0)) // len(items), []).append(f)
            S = os.environ.get("SCHED", "5")
            if S == "1": spread(wob, 12, 44); spread(wa[:8], 44, 52); spread(wa[8:], 52, 59)
            elif S == "2": spread(wob, 8, 60); spread(wa, 8, 60)
            elif S == "3": spread(wob, 12, 50); spread(wa, 40, 61)
            elif S == "4": spread(wa, 10, 52); spread(wob, 30, 62)
            elif S == "5": spread(wa[:14], 20, 62); spread(wob, 10, 62); self.wa_left = wa[14:]
        def bgslot(n, last=False):
            q = sched.get(n, [])
            if q: q.pop(0)()
            while last and q: q.pop(0)()
        early = [(i, f) for i in (1, 2, 3) for f in range(4)]
        def slot():
            if early: self.kv_load1(*early.pop(0))
        qk(0, 0); qk(0, 1); qk(1, 0); qk(1, 1)
        for n in range(64):
            i, j = divmod(n, 4)
            if n == KVPOLL_AT:
                Ld = a.newlabel("kvok"); Lp = a.newlabel("kvwait")
                a.wait(vm="apoll")
                a(f"v_cmp_ne_u32 vcc, s{sTAG}, v{vFL}\ns_cbranch_vccnz {Lp}")
                a.label(Ld)
                def emit(Ld=Ld):
                    self.poll(vPO, sFKVR, 0)
                    a(f"s_branch {Ld}")
                self.stub(Lp, emit)
                self.stamp("B kv poll")
                self.kv_load1(*early.pop(0)); self.kv_load1(*early.pop(0))
            if n == 4:
                qk(4, 0); qk(4, 1); qk(5, 0); qk(5, 1)
            if "fine" in OPT and n in (5, 8, 20, 32, 44, 52, 60): self.stamp(f"B att n={n}")
            look = n + 2 < 64 and n not in (2, 3)
            ex(n, 0)
            if n: pv(n - 1, 1)
            if n >= KVPOLL_AT and early: slot()
            elif 1 <= i <= 12: self.kv_load1(i + 3, j)
            if n >= 62: owrite(n - 62, 0)
            ex(n, 1)
            if look: qk(n + 2, 0)
            if n >= KVPOLL_AT: slot()
            bgslot(n)
            if n == 51 and "notouch" not in OPT: self.touch_ox(vT0)
            if n >= 62: owrite(n - 62, 1)
            ex(n, 2)
            pv(n, 0)
            if n >= KVPOLL_AT and early: slot()
            bgslot(n)
            if n >= 62: owrite(n - 62, 2)
            ex(n, 3)
            if look: qk(n + 2, 1)
            if n >= KVPOLL_AT: slot()
            bgslot(n, True)
            if n >= 62: owrite(n - 62, 3)
            if n == 3: assert not early
        pv(63, 1)
        for qq in range(4): owrite(2, qq)

    def finish_attention(self, layer, Lre):
        a = self.a; o = OA + 48
        Lslow = a.newlabel("slowmax"); Lok = a.newlabel("maxok")
        a(f"""s_lshl_b32 s{sT1}, s{sW}, 2
        s_add_u32 s{sT1}, s{sT1}, {L_VT}
        v_mov_b32 v{vA0+1}, s{sT1}
        v_mov_b32 v{vA0+2}, {L_VT}
        v_max3_f32 v{vT0}, v{OA+12}, v{OA+28}, v{OA+44}
        v_max_f32 v{vT0}, v{vT0}, v{OA+60}
        v_cmp_ngt_f32 vcc, {f2u(self.lmax)}, v{vT0}
        s_and_b64 vcc, vcc, s[{sUP}:{sUP+1}]
        s_cselect_b32 s{sT1}, 1, 0
        v_mov_b32 v{vT1}, s{sT1}
        ds_write_b32 v{vA0+1}, v{vT1}
        s_waitcnt lgkmcnt(0)
        s_barrier""")
        a(f"ds_read_b128 {vr(vT0,4)}, v{vA0+2}", tag="bad")
        for j in range(3):
            for qq in range(4):
                a(f"ds_read_b128 {vr(OA+16*j+4*qq,4)}, v{ADR+6} offset:{4096*j+1024*qq}", tag=("or", j))
        a.wait(lg="bad")
        a(f"""v_or3_b32 v{vT0}, v{vT0}, v{vT1}, v{vT2}
        v_or_b32 v{vT0}, v{vT0}, v{vT3}
        v_cmp_lt_u32 vcc, s{sRETRY}, v{vT0}
        s_cbranch_vccnz {Lslow}""")
        self.slow.append((Lslow, Lre))
        for j in range(3):
            a.wait(lg=("or", j))
            for p in range(8):
                a(f"v_pk_add_f32 {vr(o+2*p,2)}, {vr(o+2*p,2)}, {vr(OA+16*j+2*p,2)}")
        self.bcast_up_rcp(o + 12)
        self.publish_o(o, layer)
        a("s_barrier")

    def slow_max(self, Lslow, Lre):
        a = self.a
        a.flush_hist(); a.vm = []; a.lg = []
        a.label(Lslow)
        L = a.newlabel("smx")
        a(f"s_waitcnt vmcnt(0) lgkmcnt(0)\ns_mov_b32 s{sRETRY}, 1\ns_mov_b32 s{sT2}, 0")
        for j in range(4): a(f"v_mov_b32 v{OA+j}, 0xff800000")
        a.label(L)
        a(f"""s_xor_b32 s{sKT}, s{sKVO}, s{sT2}
        buffer_load_dwordx4 {vr(KVB[1],4)}, v{vL16}, s[4:7], s{sKT} offen sc1
        buffer_load_dwordx4 {vr(KVB[1]+4,4)}, v{vL16}, s[4:7], s{sKT} offen offset:1024 sc1
        s_waitcnt vmcnt(0)""")
        for j in range(4):
            a(f"v_mfma_f32_32x32x16_bf16 {vr(SB[0],16)}, {vr(KVB[1],4)}, {vr(QF+8*j,4)}, 0")
            a(f"v_mfma_f32_32x32x16_bf16 {vr(SB[0],16)}, {vr(KVB[1]+4,4)}, {vr(QF+8*j+4,4)}, {vr(SB[0],16)}")
            for p in range(8): a(f"v_max3_f32 v{OA+j}, v{OA+j}, v{SB[0]+2*p}, v{SB[0]+2*p+1}")
        a(f"""s_add_u32 s{sT2}, s{sT2}, 0x4000
        s_cmp_lt_u32 s{sT2}, 0x40000
        s_cbranch_scc1 {L}""")
        for j in range(4):
            a(f"""s_add_u32 s{sT0}, s{sW}, {j+1}
            s_and_b32 s{sT0}, s{sT0}, 3
            s_lshl_b32 s{sT0}, s{sT0}, 10
            s_add_u32 s{sT0}, s{sT0}, {L_VT + 1024 + 256*j}
            v_lshl_add_u32 v{vT0}, v0, 2, s{sT0}
            ds_write_b32 v{vT0}, v{OA+j}""")
        a(f"""s_lshl_b32 s{sT0}, s{sW}, 10
        s_add_u32 s{sT0}, s{sT0}, {L_VT + 1024}
        v_lshl_add_u32 v{vT0}, v0, 2, s{sT0}
        s_waitcnt lgkmcnt(0)
        s_barrier""")
        for j in range(4): a(f"ds_read_b32 v{OA+4+j}, v{vT0} offset:{256*j}")
        for f in range(4):
            a(f"buffer_load_dwordx4 {vr(KVB[0]+4*f,4)}, v{vL16}, s[4:7], s{sKVO} offen offset:{1024*f} sc1")
        a(f"""s_waitcnt vmcnt(0) lgkmcnt(0)
        v_max3_f32 v{vT0}, v{OA+4}, v{OA+5}, v{OA+6}
        v_max_f32 v{vT0}, v{vT0}, v{OA+7}
        v_mov_b32 v{vT1}, v{vT0}
        v_permlane32_swap_b32 v{vT0}, v{vT1}
        v_max_f32 v{vT0}, v{vT0}, v{vT1}
        v_add_f32 v{vM}, v{vM}, v{vT0}""")
        for r in range(64): a(f"v_mov_b32 v{OA+r}, 0")
        a(f"s_branch {Lre}")

    def finish(self):
        a = self.a
        if os.environ.get("AMP") is not None:
            L = a.newlabel("amp")
            a(f"s_waitcnt vmcnt(0)\ns_nop 0\nv_readfirstlane_b32 s20, v7\ns_memrealtime s[22:23]\ns_waitcnt lgkmcnt(0)\ns_min_u32 s20, s20, 10000")
            a.label(L)
            a(f"""s_memrealtime s[24:25]
            s_waitcnt lgkmcnt(0)
            s_sub_u32 s24, s24, s22
            s_cmp_lt_u32 s24, s20
            s_cbranch_scc1 {L}""")
        if self.stamps:
            self.stamp("end")
            a(f"""s_lshl_b32 s{sT0}, s2, 2
            s_add_u32 s{sT0}, s{sT0}, s{sW}
            s_lshl_b32 s{sT0}, s{sT0}, 8
            s_add_u32 s{sT0}, s{sT0}, {DBG}
            v_lshlrev_b32 v{vT0}, 2, v0
            buffer_store_dword v7, v{vT0}, s[4:7], s{sT0} offen""")
        a(f"""s_add_u32 s{sT0}, s2, s{sW}
        s_cmp_lg_u32 s{sT0}, 0
        s_cbranch_scc1 {self.name}_end
        s_mov_b64 exec, 1
        v_mov_b32 v{vT0}, s{sTAG}
        s_mov_b32 s{sT0}, {GEN}
        buffer_store_dword v{vT0}, off, s[4:7], s{sT0}""")
        a.label(f"{self.name}_end")
        a("s_endpgm")
        for l in self.slow: self.slow_max(*l)
        while self.stubs:
            l, emit = self.stubs.pop(0)
            a.flush_hist(); a.vm = []; a.lg = []; a.bg_hold = True
            a.label(l); emit()
        a.label(f"{self.name}_last")

    def build(self):
        self.startup()
        for it in range(2):
            self.layer_A(it)
            self.layer_B(it)
        self.finish()
        return self.a.text()
```
